```python
import torch

def _softmax(x, axis=-1):
    return torch.softmax(x, dim=axis)
def _gelu(x):
    return torch.nn.functional.gelu(x, approximate="tanh")
def _silu(x):
    return torch.nn.functional.silu(x)
def _sigmoid(x):
    return torch.sigmoid(x)
def _layernorm(x, axis=-1, eps=1e-5):
    m = x.mean(dim=axis, keepdim=True)
    v = x.var(dim=axis, keepdim=True, unbiased=False)
    return (x - m) / torch.sqrt(v + eps)
def _scatter_add(tgt, idx, src, axis=0):
    return tgt.clone().index_add_(axis, idx, src)
def _segment_sum(src, seg, n):
    out = torch.zeros((n,) + src.shape[1:], dtype=src.dtype)
    return out.index_add_(0, seg, src)
def _pad(x, pw):
    flat = tuple(v for pair in reversed(pw) for v in pair)
    return torch.nn.functional.pad(x, flat)

kernel_name = 'gated_mix__spectral_fnet__linear_kernel_hedgehog__prompt'

def setup_inputs():

    _w = (lambda a: (lambda t: t.to(torch.bfloat16) if t.is_floating_point() else t)(torch.as_tensor(a)))
    def _A_setup():
        B, S, D = 1, 2048, 448
        ns = torch.arange(S)[:, None] * torch.arange(S)[None, :]
        nd = torch.arange(D)[:, None] * torch.arange(D)[None, :]
        Ws_re = torch.cos(-2.0 * torch.pi * ns / S).to(float)
        Ws_im = torch.sin(-2.0 * torch.pi * ns / S).to(float)
        Wd_re = torch.cos(-2.0 * torch.pi * nd / D).to(float)
        Wd_im = torch.sin(-2.0 * torch.pi * nd / D).to(float)
        return {
            "x": _w((lambda *s: torch.randn(*s, dtype=torch.bfloat16) * 0.1)(B, S, D)),
            "dft_seq_re": _w(Ws_re),
            "dft_seq_im": _w(Ws_im),
            "dft_hid_re": _w(Wd_re),
            "dft_hid_im": _w(Wd_im),
        }
    _A_in = _A_setup()

    def _B_setup():
        B, S, D, H = 1, 2048, 448, 16
        Dh = D // H
        return {
            "x": _w((lambda *s: torch.randn(*s, dtype=torch.bfloat16) * 0.1)(B, S, D)),
            "wqkv": _w((lambda *s: torch.randn(*s, dtype=torch.bfloat16) * 1.6)(D, 3 * D)),
            "w_phi": _w((lambda *s: torch.randn(*s, dtype=torch.bfloat16) * 1.6)(H, Dh, Dh) * (Dh ** -0.5)),
            "wo": _w((lambda *s: torch.randn(*s, dtype=torch.bfloat16) * 1.6)(D, D)),
        }
    _B_in = _B_setup()

    return {
        "A_x": _A_in["x"],
        "A_dft_seq_re": _A_in["dft_seq_re"],
        "A_dft_seq_im": _A_in["dft_seq_im"],
        "A_dft_hid_re": _A_in["dft_hid_re"],
        "A_dft_hid_im": _A_in["dft_hid_im"],
        "B_x": _B_in["x"],
        "B_wqkv": _B_in["wqkv"],
        "B_w_phi": _B_in["w_phi"],
        "B_wo": _B_in["wo"],
        "gate_w": _w((lambda *s: torch.randn(*s, dtype=torch.bfloat16) * 0.1)(448) * 16.0),
    }

def reference(A_x, A_dft_seq_re, A_dft_seq_im, A_dft_hid_re, A_dft_hid_im, B_x, B_wqkv, B_w_phi, B_wo, gate_w):
    def _A_ref(x, dft_seq_re, dft_seq_im, dft_hid_re, dft_hid_im):
        a = torch.einsum("bsd,ed->bse", x, dft_hid_re)
        b = torch.einsum("bsd,ed->bse", x, dft_hid_im)
        y = torch.einsum("ts,bse->bte", dft_seq_re, a) - torch.einsum("ts,bse->bte", dft_seq_im, b)
        return y

    def _B_ref(x, wqkv, w_phi, wo):
        B, S, D = x.shape
        H = 16; Dh = D // H
        qkv = (lambda x, *d: x.permute(*d))((x @ wqkv).reshape(B, S, 3, H, Dh), 2, 0, 3, 1, 4)
        q, k, v = qkv[0], qkv[1], qkv[2]
        pq = torch.einsum("bhsd,hdf->bhsf", q, w_phi)
        pk = torch.einsum("bhsd,hdf->bhsf", k, w_phi)
        phi_q = torch.concatenate([_softmax(pq, axis=-1), _softmax(-pq, axis=-1)], axis=-1)
        phi_k = torch.concatenate([_softmax(pk, axis=-1), _softmax(-pk, axis=-1)], axis=-1)
        kv = torch.einsum("bhsf,bhsd->bhfd", phi_k, v)
        z  = torch.einsum("bhsf->bhf", phi_k)
        num = torch.einsum("bhqf,bhfd->bhqd", phi_q, kv)
        den = torch.einsum("bhqf,bhf->bhq", phi_q, z)[..., None] + 1e-6
        o = num / den
        return (lambda x, *d: x.permute(*d))(o, 0, 2, 1, 3).reshape(B, S, D) @ wo

    x = A_x
    g = _sigmoid((x * gate_w).sum(-1, keepdims=True))
    a = _A_ref(x, A_dft_seq_re, A_dft_seq_im, A_dft_hid_re, A_dft_hid_im)
    b = _B_ref(x, B_wqkv, B_w_phi, B_wo)
    return g * a + (1 - g) * b
```

```python
import sys
sys.path.insert(0, 'work')
from gen_lib import *
from gen_k import *

def gen_k2(cfg):
    s = Sched(); s.stamp_on = cfg.get('stamps', False); s.stamp_base = 68
    sW, sCL, sJ, sTT, sCB, sBP, sMW, sMO = 3, 4, 5, 6, 7, 8, 9, 10
    SWO, SWS, SOUT = 12, 16, 20
    sCO, sCW = 40, 48
    vL = 1
    vWo, vO, vU, vG, vWr, vOr, vUr, vT, vTb, vOut = 10, 11, 12, 13, 14, 15, 16, 17, 18, 19
    WR, OR_, TW, aB, aY, UF = 20, 52, 84, 116, 132, 20
    L_O, L_U = 57344, 114688
    s('s_cmp_ge_u32 s2, 224\ns_cbranch_scc1 K2_END')
    s.stamp('start')
    s(f'''s_load_dwordx2 {sr(SWS,2)}, s[0:1], 96
s_load_dwordx2 {sr(SWO,2)}, s[0:1], 64
s_load_dwordx2 {sr(SOUT,2)}, s[0:1], 80
v_lshrrev_b32 v4, 6, v0
v_and_b32 v{vL}, 63, v0
s_and_b32 s56, s2, 7
v_readfirstlane_b32 s{sW}, v4
s_lshr_b32 s57, s2, 3
s_lshl_b32 s{sCL}, s56, 2
s_and_b32 s58, s57, 3
s_add_u32 s{sCL}, s{sCL}, s58
s_lshr_b32 s{sJ}, s57, 2
s_lshl_b32 s58, s58, 1
s_add_u32 s58, s58, s{sJ}
s_cmp_ge_u32 s58, 7
s_cselect_b32 s59, 7, 0
s_sub_u32 s58, s58, s59
s_lshr_b32 s{sTT}, s{sW}, 1
s_and_b32 s{sCB}, s{sW}, 1
s_lshl_b32 s{sBP}, s{sTT}, 5
s_add_u32 s{sBP}, s{sBP}, s{sCL}
s_mov_b32 s{SWS+2}, {WS_N}
s_mov_b32 s{SWS+3}, 0x20000
s_mov_b32 s{SWO+2}, 401408
s_mov_b32 s{SWO+3}, 0x20000
s_mov_b32 s{SOUT+2}, {2048*896}
s_mov_b32 s{SOUT+3}, 0x20000
v_lshlrev_b32 v3, 4, v{vL}
v_and_b32 v4, 31, v{vL}
v_lshrrev_b32 v5, 5, v{vL}''')
    s(f'''s_lshl_b32 s56, s{sJ}, 1
s_add_u32 s56, s56, s{sCB}
s_lshl_b32 s60, s56, 5
v_add_u32 v6, s60, v4
v_sub_u32 v7, 448, v6
s_sub_u32 s57, 32, s{sCL}
s_and_b32 s57, s57, 31
s_cmp_ge_u32 s56, 7
s_cselect_b32 s57, s57, s{sCL}
s_cselect_b64 vcc, -1, 0
s_cselect_b32 s61, 0x80000000, 0
s_or_b32 s61, s61, {f2h(1/2048)}
v_cndmask_b32 v6, v6, v7, vcc
v_lshlrev_b32 v6, 4, v6
v_lshl_add_u32 v{vU}, v5, 12, v6
s_lshl_b32 s57, s57, 16
s_lshl_b32 s59, s{sTT}, 15
s_add_u32 s57, s57, s59
s_add_u32 s57, s57, {WS_U}
s_lshl_b32 s59, s{sCB}, 13
s_lshl_b32 s62, s{sTT}, 12
s_add_u32 s59, s59, s62
s_add_u32 s59, s59, {L_U}
s_lshl_b32 s62, s{sBP}, 7
s_add_u32 s62, s62, {WS_G}
v_lshlrev_b32 v7, 2, v4
s_waitcnt lgkmcnt(0)''')
    s.stamp('karg')
    s.vm(f'buffer_load_dword v{vG}, v7, {sr(SWS,4)}, s62 offen', 'g')
    for k in range(4):
        s(f's_add_u32 m0, s59, {1024*k}')
        s.vm(f'buffer_load_dwordx4 v{vU}, {sr(SWS,4)}, s57 offen lds', 'u')
        if k < 3: s('s_add_u32 s57, s57, 8192')
    for i in range(7):
        s(f's_lshl_b32 s{sCO+i}, s58, 12\ns_mul_i32 s{sCW+i}, s58, 57344')
        if i < 6: s('s_add_u32 s58, s58, 1\ns_cmp_eq_u32 s58, 7\ns_cselect_b32 s58, 0, s58')
    s(f'''v_lshrrev_b32 v6, 3, v{vL}
v_and_b32 v7, 7, v{vL}
v_bfe_u32 v8, v{vL}, 4, 1
v_lshlrev_b32 v8, 2, v8
v_xor_b32 v7, v7, v8
v_lshlrev_b32 v7, 4, v7
s_movk_i32 s59, 896
v_mad_u32_u24 v{vWo}, v6, s59, v7
s_mul_i32 s56, s{sW}, {16*896}
s_lshl_b32 s57, s{sJ}, 7
s_add_u32 s56, s56, s57
v_add_u32 v{vWo}, s56, v{vWo}
v_add_u32 v2, {8*896-1024}, v{vWo}
s_mul_i32 s56, s{sBP}, 28672
s_lshl_b32 s57, s{sCB}, 11
s_add_u32 s56, s56, s57
v_add_u32 v{vO}, s56, v3
s_lshl_b32 s{sMW}, s{sW}, 11
s_mul_i32 s{sMO}, s{sTT}, 28672
s_add_u32 s{sMO}, s{sMO}, s57
s_add_u32 s{sMO}, s{sMO}, {L_O}''')
    def dma(i):
        return [f's_add_u32 m0, s{sMO}, {4096*i}',
                ('vm', f'buffer_load_dwordx4 v{vO}, {sr(SWS,4)}, s{sCO+i} offen lds'),
                ('vm', f'buffer_load_dwordx4 v{vO}, {sr(SWS,4)}, s{sCO+i} offen offset:1024 lds'),
                f's_add_u32 m0, s{sMW}, {8192*i}',
                ('vm', f'buffer_load_dwordx4 v{vWo}, {sr(SWO,4)}, s{sCW+i} offen lds'),
                ('vm', f'buffer_load_dwordx4 v2, {sr(SWO,4)}, s{sCW+i} offen offset:1024 lds', f'c{i}')]
    s.run(dma(0))
    s(f'''v_bfe_u32 v6, v{vL}, 2, 2
v_lshl_add_u32 v7, v5, 3, v6
v_lshlrev_b32 v7, 7, v7
v_lshrrev_b32 v6, 1, v6
v_xor_b32 v6, s{sCB}, v6
v_lshl_add_u32 v7, v6, 6, v7
v_bfe_u32 v6, v{vL}, 4, 1
v_lshl_add_u32 v7, v6, 5, v7
v_and_b32 v6, 3, v{vL}
v_lshl_add_u32 v{vWr}, v6, 3, v7
s_mul_i32 s56, s{sTT}, 28672
s_add_u32 s56, s56, {L_O}
v_add_u32 v{vOr}, s56, v3
s_lshl_b32 s56, s{sCB}, 13
s_add_u32 s56, s56, {L_U}
v_add_u32 v{vUr}, s56, v3
v_lshlrev_b32 v6, 6, v4
v_add_u32 v6, s{sBP}, v6
v_cvt_f32_u32 v7, v6
v_mul_f32 v{vT}, s61, v7
v_cvt_f32_u32 v7, v5
v_mul_f32 v7, 4.0, v7
v_mul_f32 v{vTb}, v7, v{vT}
s_movk_i32 s59, 896
v_lshlrev_b32 v7, 4, v5
v_mad_u32_u24 v{vOut}, v6, s59, v7
s_lshl_b32 s60, s60, 1''')
    s.run(dma(1))
    tw = []
    for ks in range(8):
        for j in range(4):
            tw += [f'v_fmamk_f32 v6, v{vT}, {f2h(8*ks+j)}, v{vTb}', 'v_cos_f32 v7, v6', 'v_sin_f32 v6, v6',
                   f'v_cvt_pk_bf16_f32 v{TW+4*ks+j}, v7, v6']
    s.run(tw[:64]); s.run(dma(2)); s.run(tw[64:])
    s.stamp('tw')
    s.wait(vtag='u')
    s(f'''v_mul_f32 v6, {hex(LOG2E | 0x80000000)}, v{vG}
v_exp_f32 v6, v6
s_barrier''')
    for ks in range(8): s.ds(f'ds_read_b128 {vr(UF+4*ks,4)}, v{vUr} offset:{1024*ks}', f'uf{ks}')
    s(f'''v_add_f32 v7, 1.0, v6
v_rcp_f32 v{vG}, v7''')
    s(f'v_sub_f32 v9, 1.0, v{vG}')
    for ks in range(8):
        s.wait(dtag=f'uf{ks}')
        s(mfma(vr(aY,16), vr(UF+4*ks,4), vr(TW+4*ks,4), vr(aY,16) if ks else '0'))
    s.stamp('st2')
    for c in range(7):
        if c + 3 <= 6: s.run(dma(c + 3))
        s.wait(vtag=f'c{c}'); s('s_barrier')
        for k in range(4):
            sl = 4 * c + k; r = 4 * (sl % 8)
            s.ds(f'ds_read_b64_tr_b16 {vr(WR+r,2)}, v{vWr} offset:{2048*sl}')
            s.ds(f'ds_read_b64_tr_b16 {vr(WR+r+2,2)}, v{vWr} offset:{2048*sl+512}')
            s.ds(f'ds_read_b128 {vr(OR_+r,4)}, v{vOr} offset:{1024*sl}', f'f{sl}')
        if c == 1:
            for r in range(16): s(f'v_mul_f32 v{aY+r}, v{aY+r}, v{vG}')
        for k in range(4):
            sl = 4 * c + k; r = 4 * (sl % 8)
            s.wait(dtag=f'f{sl}')
            s(mfma(vr(aB,16), vr(WR+r,4), vr(OR_+r,4), vr(aB,16) if sl else '0'))
    s.stamp('gemm')
    for Q in range(2):
        for r in range(8 * Q, 8 * Q + 8): s(f'v_fma_f32 v{aB+r}, v{aB+r}, v9, v{aY+r}')
        for j in range(4 * Q, 4 * Q + 4): s(f'v_cvt_pk_bf16_f32 v{TW+j}, v{aB+2*j}, v{aB+2*j+1}')
        s(f'v_permlane32_swap_b32 v{TW+4*Q}, v{TW+4*Q+2}\nv_permlane32_swap_b32 v{TW+4*Q+1}, v{TW+4*Q+3}')
        s.vm(f'buffer_store_dwordx4 {vr(TW+4*Q,4)}, v{vOut}, {sr(SOUT,4)}, s60 offen offset:{32*Q}')
    s.stamp('end')
    if s.stamp_on:
        s('s_waitcnt vmcnt(0)')
        s.stamp('drain')
        s(f's_lshl_b32 s58, s2, 2\ns_add_u32 s58, s58, s{sW}\ns_add_u32 s58, s58, 1024')
        stamp_store(s, SWS, 58, 4)
    s('K2_END:\ns_endpgm')
    return s
```

```python
import re

def _expand(tok):
    tok = tok.strip()
    neg = tok.startswith('-')
    if neg: tok = tok[1:]
    if tok.startswith('abs(') and tok.endswith(')'): tok = tok[4:-1]
    if tok.startswith('|') and tok.endswith('|'): tok = tok[1:-1]
    m = re.fullmatch(r'([vas])(\d+)', tok)
    if m: return m.group(1), [int(m.group(2))]
    m = re.fullmatch(r'([vas])\[(\d+):(\d+)\]', tok)
    if m: return m.group(1), list(range(int(m.group(2)), int(m.group(3)) + 1))
    if tok == 'vcc': return 's', ['vcc_lo', 'vcc_hi']
    if tok in ('vcc_lo', 'vcc_hi', 'm0', 'exec_lo', 'exec_hi'): return 's', [tok]
    if tok == 'exec': return 's', ['exec_lo', 'exec_hi']
    return None, []

def regs(tok):
    k, idx = _expand(tok)
    if k is None: return set()
    return {(k, i) for i in idx}

TRANS = ('v_exp_f32', 'v_log_f32', 'v_rcp_f32', 'v_rsq_f32', 'v_sqrt_f32', 'v_sin_f32', 'v_cos_f32', 'v_rcp_iflag_f32')

class Ins:
    __slots__ = ('text', 'mn', 'cls', 'w', 'r', 'states', 'passes', 'cread', 'abread', 'storedata', 'lds_dma',
                 'trans', 'perm', 'dpp', 'rdlane', 'sread_const', 'opsel', 'dl', 'laneSel')
    def __init__(s, text):
        s.text = text
        t = text.split(';')[0].strip()
        parts = t.split(None, 1)
        s.mn = mn = parts[0]
        rest = parts[1] if len(parts) > 1 else ''
        ops, depth, cur = [], 0, ''
        for ch in rest:
            if ch in '[(': depth += 1
            if ch in '])': depth -= 1
            if ch == ',' and depth == 0:
                ops.append(cur.strip()); cur = ''
            else: cur += ch
        if cur.strip(): ops.append(cur.strip())
        mods = ''
        if ops:
            last = ops[-1].split(None, 1)
            if len(last) > 1:
                ops[-1] = last[0]; mods = last[1]
        s.w = set(); s.r = set(); s.states = 1; s.passes = 0; s.cread = set(); s.abread = set()
        s.storedata = set(); s.lds_dma = False; s.trans = False; s.perm = False; s.dpp = False
        s.rdlane = False; s.sread_const = set(); s.opsel = False; s.dl = False; s.laneSel = set()
        base = re.sub(r'_(e32|e64|dpp|sdwa)$', '', mn)
        if mn == 's_nop':
            s.cls = 'nop'; s.states = int(ops[0], 0) + 1
        elif mn.startswith('v_mfma'):
            s.cls = 'mfma'
            s.w = regs(ops[0]); s.abread = regs(ops[1]) | regs(ops[2]); s.cread = regs(ops[3])
            s.r = s.abread | s.cread
            if '32x32x16' in mn or '32x32x8' in mn: s.passes = 8
            elif '16x16x32' in mn or '16x16x16' in mn: s.passes = 4
            else: raise ValueError('mfma passes? ' + mn)
        elif mn.startswith('v_'):
            s.cls = 'valu'
            s.trans = base in TRANS
            s.dpp = mn.endswith('_dpp') or 'row_' in mods or 'quad_perm' in mods or 'wave_' in mods
            s.opsel = ('op_sel:' in mods and not base.startswith('v_pk_') and not base.startswith('v_dot')) or mn.endswith('_sdwa') or 'dst_sel' in mods
            s.dl = base.startswith('v_dot')
            if base.startswith('v_permlane') and 'swap' in base:
                s.perm = True
                s.w = regs(ops[0]) | regs(ops[1]); s.r = set(s.w)
            elif base == 'v_swap_b32':
                s.w = regs(ops[0]) | regs(ops[1]); s.r = set(s.w)
            elif base in ('v_add_co_u32', 'v_sub_co_u32', 'v_subrev_co_u32'):
                s.w = regs(ops[0]) | regs(ops[1])
                for o in ops[2:]: s.r |= regs(o)
            elif base in ('v_addc_co_u32', 'v_subb_co_u32'):
                s.w = regs(ops[0]) | regs(ops[1])
                for o in ops[2:]: s.r |= regs(o)
            elif base == 'v_nop':
                pass
            else:
                s.w = regs(ops[0])
                for o in ops[1:]: s.r |= regs(o)
                if base.startswith('v_cmpx'): s.w |= regs('exec')
                if base in ('v_fmac_f32', 'v_pk_fmac_f16', 'v_dot2c_f32_bf16', 'v_dot2c_f32_f16', 'v_writelane_b32', 'v_mac_f32'):
                    s.r |= regs(ops[0])
                if s.opsel or s.dpp: s.r |= regs(ops[0])
                if base in ('v_readfirstlane_b32', 'v_readlane_b32'): s.rdlane = True
                if base in ('v_readlane_b32', 'v_writelane_b32'): s.laneSel = regs(ops[2])
                if base == 'v_cndmask_b32' and len(ops) == 3: s.r |= regs('vcc')
            s.sread_const = {x for x in s.r if x[0] == 's'}
        elif mn.startswith('buffer_') or mn.startswith('global_'):
            s.cls = 'vmem'
            allm = ' ' + mods + ' '
            if mn.startswith('buffer_'):
                if mn in ('buffer_wbl2', 'buffer_inv'):
                    pass
                elif ' lds ' in allm:
                    s.lds_dma = True
                    for o in ops: s.r |= regs(o)
                    s.r |= regs('m0')
                elif 'load' in mn:
                    s.w = regs(ops[0])
                    for o in ops[1:]: s.r |= regs(o)
                else:
                    for o in ops: s.r |= regs(o)
                    d = regs(ops[0])
                    if len(d) >= 3: s.storedata = d
                    if 'atomic' in mn and ' sc0 ' in allm: s.w = d
            else:
                if 'load_lds' in mn:
                    s.lds_dma = True
                    for o in ops: s.r |= regs(o)
                    s.r |= regs('m0')
                elif 'load' in mn:
                    s.w = regs(ops[0])
                    for o in ops[1:]: s.r |= regs(o)
                elif 'atomic' in mn and ' sc0 ' in allm:
                    s.w = regs(ops[0])
                    for o in ops[1:]: s.r |= regs(o)
                else:
                    for o in ops: s.r |= regs(o)
                    d = regs(ops[1])
                    if len(d) >= 3: s.storedata = d
        elif mn.startswith('ds_'):
            s.cls = 'ds'
            if 'read' in mn or 'permute' in mn or 'swizzle' in mn or '_rtn' in mn:
                s.w = regs(ops[0])
                for o in ops[1:]: s.r |= regs(o)
            else:
                for o in ops: s.r |= regs(o)
        elif mn.startswith('s_'):
            s.cls = 'salu'
            nodst = ('s_cmp', 's_waitcnt', 's_barrier', 's_branch', 's_cbranch', 's_endpgm', 's_sleep', 's_setprio', 's_bitcmp', 's_sethalt', 's_setreg')
            if mn.startswith(nodst):
                for o in ops: s.r |= regs(o)
            else:
                s.w = regs(ops[0]) if ops else set()
                for o in ops[1:]: s.r |= regs(o)
                if 'saveexec' in mn: s.w |= regs('exec')
        else:
            raise ValueError('unknown instr ' + text)

def need(p, c):
    n = 0
    pv = {x for x in p.w if x[0] in 'va'}
    ps = {x for x in p.w if x[0] == 's'}
    cv_r = {x for x in c.r if x[0] in 'va'}
    cv_w = {x for x in c.w if x[0] in 'va'}
    if p.cls == 'valu':
        if c.cls == 'mfma' and pv & c.r: n = max(n, 3 if p.dl else 2)
        if c.cls == 'mfma' and ('s', 'exec_lo') in ps: n = max(n, 4)
        if c.cls == 'valu':
            if (c.perm or c.dpp) and pv & cv_r: n = max(n, 2)
            if c.dpp and ('s', 'exec_lo') in ps: n = max(n, 5)
            if c.rdlane and pv & cv_r: n = max(n, 1)
            if p.trans and not c.trans and pv & cv_r: n = max(n, 1)
            if p.opsel and pv & (cv_r | cv_w): n = max(n, 1)
            if p.dl and pv & (cv_r | cv_w):
                if not (c.mn == p.mn): n = max(n, 3)
                else: n = max(n, 3 if False else 0)
            if ps & c.sread_const: n = max(n, 2)
            if ps & c.laneSel: n = max(n, 4)
            if ('s', 'exec_lo') in ps and (c.rdlane or c.perm or c.laneSel): n = max(n, 4)
        if c.cls in ('vmem', 'ds') and p.dl and pv & cv_r: n = max(n, 3)
        if c.cls == 'vmem' and ps & c.r: n = max(n, 5)
        if c.cls == 'salu' and ps & c.r: n = max(n, 2)
    if p.cls == 'salu':
        if ('s', 'm0') in ps and c.cls == 'vmem' and c.lds_dma: n = max(n, 1)
    if p.cls == 'vmem' and p.storedata:
        if p.storedata & cv_w: n = max(n, 2)
    if p.cls == 'mfma':
        far = {2: 5, 4: 8, 8: 12, 16: 20}[p.passes]
        part = {2: 4, 4: 6, 8: 10, 16: 18}[p.passes]
        war = {2: 1, 4: 3, 8: 7, 16: 15}[p.passes]
        if c.cls == 'mfma':
            if pv & c.abread: n = max(n, far)
            if pv & c.cread:
                if not (c.cread == pv and c.passes == p.passes): n = max(n, part)
            elif pv & c.w:
                n = max(n, part)
        elif c.cls in ('valu', 'vmem', 'ds'):
            if pv & (cv_r | cv_w): n = max(n, far)
            if p.cread & cv_w: n = max(n, war if c.cls == 'valu' else war)
    return n

class Asm:
    WIN = 24
    def __init__(s):
        s.lines = []
        s.paths = [[]]
        s.pending = {}
        s.labels = {}
        s.body = []
        s.nops = 0
        s.count = 0
    def raw(s, t): s.lines.append(t)
    def c(s, t): s.lines.append('    ; ' + t)
    def _req(s, paths, ins):
        k = 0
        for h in paths:
            d = 0
            for p in reversed(h):
                if d >= s.WIN: break
                n = need(p, ins)
                if n - d > k: k = n - d
                d += p.states
        return k
    def _push(s, ins):
        for h in s.paths:
            h.append(ins)
            tot = 0; cut = 0
            for i in range(len(h) - 1, -1, -1):
                tot += h[i].states
                if tot > s.WIN + 16: cut = i; break
            if cut: del h[:cut]
        u = []
        for h in s.paths:
            if not any(len(h) == len(g) and all(a is b for a, b in zip(h, g)) for g in u): u.append(h)
        s.paths = u
        s.body.append(ins)
        s.lines.append('    ' + ins.text)
        s.count += 1
    def nop(s, k):
        while k > 0:
            m = min(k, 16)
            s._push(Ins('s_nop %d' % (m - 1))); k -= m
            s.nops += 1
    def __call__(s, text):
        for t in text.split('\n'):
            t = t.strip()
            if not t or t.startswith(';'):
                if t: s.lines.append('    ' + t)
                continue
            if t.endswith(':'):
                s.label(t[:-1]); continue
            ins = Ins(t)
            k = s._req(s.paths, ins)
            if ins.mn.startswith('s_cbranch') or ins.mn == 's_branch':
                tgt = t.split()[1]
                if tgt in s.labels:
                    extra = 0
                    for h in s.paths:
                        hh = list(h) + [ins]
                        d = 0
                        for b in s.body[s.labels[tgt]:]:
                            if isinstance(b, str): continue
                            r = s._req([hh], b)
                            extra = max(extra, r)
                            hh.append(b); d += b.states
                            if d > s.WIN: break
                    k = max(k, extra)
            if k: s.nop(k)
            s._push(ins)
            if ins.mn.startswith('s_cbranch') or ins.mn == 's_branch':
                tgt = t.split()[1]
                if tgt not in s.labels:
                    s.pending.setdefault(tgt, []).extend([list(h) for h in s.paths])
                if ins.mn == 's_branch': s.paths = [[]]
            if ins.mn == 's_endpgm': s.paths = [[]]
    def label(s, name):
        s.labels[name] = len(s.body)
        s.paths = s.paths + s.pending.pop(name, [])
        s.lines.append(name + ':')
    def text(s): return '\n'.join(s.lines) + '\n'

HEADER = ''';   offset   0: d_in[0] A_x  shape=(1, 2048, 448) dtype=bfloat16
'''

def build_file(kernels, header=HEADER):
    out = ['; Kernarg layout for this problem (104 bytes, ptrs only, base s[0:1]):', header.rstrip()]
    if len(kernels) == 1 and not kernels[0].get('aslist'):
        k = kernels[0]
        out.append('; @launch grid=(%d,1,1) block=(%d,1,1) lds=%d' % (k['grid'], k['block'], k['lds']))
    else:
        for k in kernels:
            out.append('; @launch kernel=%s grid=(%d,1,1) block=(%d,1,1) lds=%d' % (k['name'], k['grid'], k['block'], k['lds']))
    out.append('.amdgcn_target "amdgcn-amd-amdhsa--gfx950"')
    out.append('.text')
    seen = set()
    for k in kernels:
        if k['name'] in seen: continue
        seen.add(k['name'])
        out += ['.globl ' + k['name'], '.p2align 8', '.type %s,@function' % k['name'], k['name'] + ':', k['asm'].text().rstrip()]
    out.append('.section .rodata,"a"')
    seen = set()
    for k in kernels:
        if k['name'] in seen: continue
        seen.add(k['name'])
        acc = (k['vgpr'] + 3) // 4 * 4
        tot = acc + k.get('agpr', 0) if k.get('agpr', 0) else k['vgpr']
        out += ['.p2align 6', '.amdhsa_kernel ' + k['name'],
                '  .amdhsa_next_free_vgpr %d' % tot,
                '  .amdhsa_next_free_sgpr %d' % k.get('sgpr', 102),
                '  .amdhsa_accum_offset %d' % acc,
                '  .amdhsa_group_segment_fixed_size 0',
                '  .amdhsa_kernarg_size 104',
                '  .amdhsa_user_sgpr_count 2',
                '  .amdhsa_user_sgpr_kernarg_segment_ptr 1',
                '  .amdhsa_system_sgpr_workgroup_id_x 1',
                '.end_amdhsa_kernel']
    return '\n'.join(out) + '\n'

class Sched:
    def __init__(s):
        s.a = Asm(); s.nvm = 0; s.nds = 0; s.vt = {}; s.dt = {}; s.vdone = 0; s.ddone = 0
        s.stamps = []; s.stamp_on = False; s.stamp_base = 0
    def __call__(s, text): s.a(text)
    def c(s, t): s.a.c(t)
    def vm(s, text, tag=None):
        s.a(text); s.nvm += 1
        if tag is not None: s.vt[tag] = s.nvm
    def ds(s, text, tag=None):
        s.a(text); s.nds += 1
        if tag is not None: s.dt[tag] = s.nds
    def wait(s, vtag=None, dtag=None):
        parts = []
        if vtag is not None:
            q = s.nvm if vtag == 'all' else s.vt[vtag]
            if q > s.vdone:
                n = min(s.nvm - q, 63); parts.append('vmcnt(%d)' % n); s.vdone = s.nvm - n
        if dtag is not None:
            q = s.nds if dtag == 'all' else s.dt[dtag]
            if q > s.ddone:
                n = min(s.nds - q, 15); parts.append('lgkmcnt(%d)' % n); s.ddone = s.nds - n
        if parts: s.a('s_waitcnt ' + ' '.join(parts))
    def stamp(s, name):
        if not s.stamp_on or name in getattr(s, 'stamp_skip', ()): return
        r = s.stamp_base + 2 * len(s.stamps)
        s.stamps.append(name)
        s.a('s_memrealtime s[%d:%d]' % (r, r + 1))
    def run(s, items):
        for it in items:
            if isinstance(it, str): s.a(it)
            elif isinstance(it, list): s.run(it)
            elif it[0] == 'vm': s.vm(it[1], it[2] if len(it) > 2 else None)
            elif it[0] == 'ds': s.ds(it[1], it[2] if len(it) > 2 else None)
            elif it[0] == 'wv': s.wait(vtag=it[1])
            elif it[0] == 'wl': s.wait(dtag=it[1])
            elif it[0] == 'w': s.wait(vtag=it[1], dtag=it[2])
            elif it[0] == 'st': s.stamp(it[1])
            elif it[0] == 'fn': it[1]()
            elif it[0] == 'raw':
                s.a.raw(it[1]); s.a.paths = [[]]
            else: raise ValueError(it)

def spread(groups, fill, start=0, end=None):
    end = len(groups) if end is None else end
    n = end - start
    out = []; k = 0
    for gi, g in enumerate(groups):
        out.append(g)
        if start <= gi < end:
            tgt = (len(fill) * (gi - start + 1) + n - 1) // n
            while k < tgt and k < len(fill):
                out.append(fill[k]); k += 1
    out += fill[k:]
    return out
```

```python
import sys
sys.path.insert(0, 'work')
from gen_lib import *
BASE = 'gated_mix__spectral_fnet__linear_kernel_hedgehog__prompt'
K1N = BASE + '_kernel'
K2N = BASE + '_p2_kernel'
WS_O, WS_U, WS_P, WS_G, WS_ST = 0, 0x200000, 0x400000, 0x500000, 0x600000
WS_N = 0x700000
LOG2E = 0x3fb8aa3b
def f2h(x):
    import struct
    return '0x%08x' % struct.unpack('<I', struct.pack('<f', x))[0]
def vr(b, n): return 'v[%d:%d]' % (b, b + n - 1)
def ar(b, n): return 'a[%d:%d]' % (b, b + n - 1)
def sr(b, n): return 's[%d:%d]' % (b, b + n - 1)
def mfma(d, a, b, c): return 'v_mfma_f32_32x32x16_bf16 %s, %s, %s, %s' % (d, a, b, c)

def stamp_store(s, SWS, slot_expr_sgpr, vt):
    if not s.stamp_on: return
    s('s_waitcnt lgkmcnt(0)')
    s(f's_lshl_b32 s56, s{slot_expr_sgpr}, 7\ns_add_u32 s56, s56, {WS_ST}\nv_mov_b32 v{vt}, s56\ns_mov_b64 exec, 1')
    for i in range(len(s.stamps)):
        s(f'v_mov_b32 v{vt+1}, s{s.stamp_base+2*i}\nbuffer_store_dword v{vt+1}, v{vt}, {sr(SWS,4)}, 0 offen offset:{4*i}')
    s('s_getreg_b32 s57, hwreg(HW_REG_XCC_ID)')
    s(f'v_mov_b32 v{vt+1}, s57\nbuffer_store_dword v{vt+1}, v{vt}, {sr(SWS,4)}, 0 offen offset:124')

def softmax_items(P, EM, PH, T, sC, sNC, vPAD):
    it = []
    mx, mn = T, T + 1
    it.append(f'v_max3_f32 v{mx}, v{P}, v{P+1}, v{P+2}')
    it.append(f'v_min3_f32 v{mn}, v{P}, v{P+1}, v{P+2}')
    for k in range(3, 15, 2):
        it.append(f'v_max3_f32 v{mx}, v{mx}, v{P+k}, v{P+k+1}')
        it.append(f'v_min3_f32 v{mn}, v{mn}, v{P+k}, v{P+k+1}')
    it.append(f'v_max_f32 v{mx}, v{mx}, v{P+15}')
    it.append(f'v_min_f32 v{mn}, v{mn}, v{P+15}')
    it.append(f'v_mov_b32 v{T+2}, v{mx}')
    it.append(f'v_mov_b32 v{T+3}, v{mn}')
    it.append(f'v_permlane32_swap_b32 v{mx}, v{T+2}')
    it.append(f'v_permlane32_swap_b32 v{mn}, v{T+3}')
    it.append(f'v_max_f32 v{mx}, v{mx}, v{T+2}')
    it.append(f'v_min_f32 v{mn}, v{mn}, v{T+3}')
    it.append(f'v_mul_f32 v{mx}, s{sNC}, v{mx}')
    it.append(f'v_mul_f32 v{mn}, s{sC}, v{mn}')
    it.append(f'v_add_f32 v{T+2}, v{mx}, v{vPAD}')
    it.append(f'v_add_f32 v{T+3}, v{mn}, v{vPAD}')
    sp = [T + 4, T + 5]; sm = [T + 6, T + 7]
    for r in range(16):
        bp = mx if r < 12 else T + 2
        bm = mn if r < 12 else T + 3
        it.append(f'v_fma_f32 v{EM+r}, v{P+r}, s{sNC}, v{bm}')
        it.append(f'v_fma_f32 v{P+r}, v{P+r}, s{sC}, v{bp}')
        it.append(f'v_exp_f32 v{EM+r}, v{EM+r}')
        it.append(f'v_exp_f32 v{P+r}, v{P+r}')
        if r >= 1:
            q = r - 1
            if q == 1 or q == 0: continue
            if q == 2:
                it.append(f'v_add_f32 v{sm[0]}, v{EM}, v{EM+2}'); it.append(f'v_add_f32 v{sp[0]}, v{P}, v{P+2}')
            elif q == 3:
                it.append(f'v_add_f32 v{sm[1]}, v{EM+1}, v{EM+3}'); it.append(f'v_add_f32 v{sp[1]}, v{P+1}, v{P+3}')
            else:
                it.append(f'v_add_f32 v{sm[q&1]}, v{sm[q&1]}, v{EM+q}'); it.append(f'v_add_f32 v{sp[q&1]}, v{sp[q&1]}, v{P+q}')
    it.append(f'v_add_f32 v{sm[1]}, v{sm[1]}, v{EM+15}'); it.append(f'v_add_f32 v{sp[1]}, v{sp[1]}, v{P+15}')
    it.append(f'v_add_f32 v{sm[0]}, v{sm[0]}, v{sm[1]}'); it.append(f'v_add_f32 v{sp[0]}, v{sp[0]}, v{sp[1]}')
    it.append(f'v_mov_b32 v{sm[1]}, v{sm[0]}'); it.append(f'v_mov_b32 v{sp[1]}, v{sp[0]}')
    it.append(f'v_permlane32_swap_b32 v{sm[0]}, v{sm[1]}'); it.append(f'v_permlane32_swap_b32 v{sp[0]}, v{sp[1]}')
    it.append(f'v_add_f32 v{sm[0]}, v{sm[0]}, v{sm[1]}'); it.append(f'v_add_f32 v{sp[0]}, v{sp[0]}, v{sp[1]}')
    it.append(f'v_rcp_f32 v{sp[0]}, v{sp[0]}'); it.append(f'v_rcp_f32 v{sm[0]}, v{sm[0]}')
    for j in range(8):
        it.append(f'v_mul_f32 v{P+2*j}, v{P+2*j}, v{sp[0]}'); it.append(f'v_mul_f32 v{P+2*j+1}, v{P+2*j+1}, v{sp[0]}')
        it.append(f'v_cvt_pk_bf16_f32 v{PH+j}, v{P+2*j}, v{P+2*j+1}')
    for j in range(8):
        it.append(f'v_mul_f32 v{EM+2*j}, v{EM+2*j}, v{sm[0]}'); it.append(f'v_mul_f32 v{EM+2*j+1}, v{EM+2*j+1}, v{sm[0]}')
        it.append(f'v_cvt_pk_bf16_f32 v{PH+8+j}, v{EM+2*j}, v{EM+2*j+1}')
    return it

def gen_k1(cfg):
    s = Sched(); s.stamp_on = cfg.get('stamps', False); s.stamp_base = 68
    sW, sRB, sH, sHQ, sBETA, sXB, sWB, sP = 3, 4, 5, 6, 7, 9, 10, 11
    SX, SW, SPHI, SD, SGW, SWS, SDBG = 12, 16, 20, 24, 28, 32, 36
    sCX, sCW = 40, 48
    sC, sNC, sCI = 47, 55, 8
    sDEX = 60
    sM28 = 62
    vL, vPAD = 1, 2
    vWk, vWv, vWq, vX, vD, vPhi, vGw = 10, 11, 12, 13, 17, 18, 19
    vXr, vHi, vLo, vMid, vPr, vDr = 20, 24, 25, 26, 27, 28
    RING, aK, aV, aQ, aD, P, EM, KB, WF, PH, T, KV = 32, 64, 80, 96, 112, 128, 144, 160, 168, 176, 192, 224
    VB = aD
    AI, ATW = 112, 120
    L_WK, L_WV, L_PHI, L_UX, L_KX = 114688, 143360, 159744, 114688, 114688 + 8192
    s('s_cmp_ge_u32 s2, 256\ns_cbranch_scc1 K1_END')
    s.stamp('start')
    s(f'''s_load_dwordx2 {sr(SW,2)}, s[0:1], 48
s_load_dwordx2 {sr(SX,2)}, s[0:1], 0
s_load_dwordx2 {sr(SPHI,2)}, s[0:1], 56
s_load_dwordx2 {sr(SWS,2)}, s[0:1], 96
s_load_dwordx4 s[64:67], s[0:1], 24
s_load_dwordx2 {sr(SGW,2)}, s[0:1], 72
s_load_dwordx2 {sr(SDBG,2)}, s[0:1], 88
v_lshrrev_b32 v4, 6, v0
v_and_b32 v{vL}, 63, v0
s_and_b32 s56, s2, 7
v_readfirstlane_b32 s{sW}, v4
s_lshr_b32 s57, s2, 3
s_and_b32 s{sRB}, s56, 3
s_lshl_b32 s{sRB}, s{sRB}, 2
s_and_b32 s58, s57, 3
s_add_u32 s{sRB}, s{sRB}, s58
s_lshr_b32 s{sH}, s56, 2
s_lshl_b32 s{sH}, s{sH}, 3
s_lshr_b32 s58, s57, 2
s_add_u32 s{sH}, s{sH}, s58
s_xor_b32 s{sHQ}, s{sH}, 1
v_lshrrev_b32 v4, 2, v{vL}
v_and_b32 v5, 3, v{vL}
v_lshlrev_b32 v5, 4, v5
v_min_u32 v5, 40, v5
s_movk_i32 s59, 2688
v_mad_u32_u24 v{vWk}, v4, s59, v5
s_lshl_b32 s58, s{sRB}, 1
s_add_u32 s58, s58, s{sH}
s_mul_i32 s59, s58, 37
s_lshr_b32 s59, s59, 8
s_mul_i32 s59, s59, 7
s_sub_u32 s58, s58, s59
s_mul_i32 s56, s{sW}, 43008
s_mul_i32 s57, s{sH}, 56
s_add_u32 s56, s56, s57
s_add_u32 s56, s56, 896
v_add_u32 v{vWk}, s56, v{vWk}
s_lshl_b32 s{sWB}, s{sW}, 10
s_add_u32 s{sWB}, s{sWB}, {L_WK}
s_mov_b32 s{SW+2}, {448*2688}
s_mov_b32 s{SW+3}, 0x20000
s_mov_b32 s{SX+2}, {2048*896}
s_mov_b32 s{SX+3}, 0x20000
s_mov_b32 s{SPHI+2}, 25088
s_mov_b32 s{SPHI+3}, 0x20000
s_mov_b32 s{SWS+2}, {WS_N}
s_mov_b32 s{SWS+3}, 0x20000''')
    for i in range(7):
        s(f's_lshl_b32 s{sCX+i}, s58, 7\ns_mul_i32 s{sCW+i}, s58, {64*2688}')
        if i < 6: s('s_add_u32 s58, s58, 1\ns_cmp_eq_u32 s58, 7\ns_cselect_b32 s58, 0, s58')
    s(f'''s_and_b32 s56, s{sW}, 1
s_lshl_b32 s56, s56, 4
v_add_u32 v6, s56, v4
s_cmp_lt_u32 s{sW}, 2
s_cselect_b32 s57, s{sH}, s{sHQ}
s_mul_i32 s57, s57, 1568
v_mad_u32_u24 v{vPhi}, v6, 56, v5
v_add_u32 v{vPhi}, s57, v{vPhi}
v_cmp_lt_u32 vcc, 27, v6
v_bfrev_b32 v7, 1
v_cndmask_b32 v{vPhi}, v{vPhi}, v7, vcc
s_lshl_b32 s{sBETA}, s{sRB}, 2
s_add_u32 s{sBETA}, s{sBETA}, s{sW}
s_mul_i32 s{sXB}, s{sW}, 28672
v_lshlrev_b32 v3, 4, v{vL}
s_waitcnt lgkmcnt(0)''')
    s.stamp('karg')
    s(f'''s_add_u32 s56, s{sH}, 2
s_and_b32 s56, s56, 15
s_cmp_ge_u32 s56, 4
s_cbranch_scc1 K1_NOCLR
s_xor_b32 s{sCI}, s56, 2
s_lshl_b32 s56, s{sCI}, 2
s_add_u32 s56, s56, s{sW}
s_lshl_b32 s56, s56, 4
s_add_u32 s56, s56, s{sRB}
s_lshl_b32 s56, s56, 12
s_add_u32 s56, s56, {WS_P}
v_mov_b32 v32, -1
v_mov_b32 v33, -1
v_mov_b32 v34, -1
v_mov_b32 v35, -1''')
    for i in range(4):
        s(f'buffer_store_dwordx4 v[32:35], v3, {sr(SWS,4)}, s56 offen offset:{1024*i} sc1')
    s('K1_NOCLR:')
    for i in range(7):
        s(f's_add_u32 m0, s{sWB}, {4096*i}')
        s.vm(f'buffer_load_dwordx4 v{vWk}, {sr(SW,4)}, s{sCW+i} offen lds', f'wk{i}')
        if i == 0:
            s(f'''v_lshrrev_b32 v4, 3, v{vL}
v_and_b32 v5, 7, v{vL}
v_lshrrev_b32 v6, 4, v{vL}
v_xor_b32 v5, v5, v6
v_lshlrev_b32 v5, 4, v5
s_mov_b32 s59, 57344
s_mul_i32 s57, s{sBETA}, 896
v_mad_u32_u24 v{vX}, v4, s59, v5
v_add_u32 v{vX}, s57, v{vX}
v_xor_b32 v{vX+1}, 64, v{vX}
v_add_u32 v{vX+1}, {458752-1024}, v{vX+1}
v_add_u32 v{vX+2}, {2*(458752-1024)}, v{vX}
v_add_u32 v{vX+3}, {2*(458752-1024)}, v{vX+1}''')
    s(f's_add_u32 m0, s{sWB}, {L_PHI-L_WK}')
    s.vm(f'buffer_load_dwordx4 v{vPhi}, {sr(SPHI,4)}, 0 offen lds', 'phi')
    def xdma(c):
        it = [f's_add_u32 m0, s{sXB}, {4096*c}']
        for i in range(4):
            it.append(('vm', f'buffer_load_dwordx4 v{vX+i}, {sr(SX,4)}, s{sCX+c} offen offset:{1024*i} lds', f'x{c}'))
        return it
    def wvdma(i):
        m = f's_add_u32 m0, s{sWB}, {L_WV-L_WK+4096*i}' if i < 4 else f's_add_u32 m0, s{sXB}, {1024*(i-4)}'
        return [m, ('vm', f'buffer_load_dwordx4 v{vWv}, {sr(SW,4)}, s{sCW+i} offen lds', f'wv{i}')]
    def wqdma(i):
        return [f's_add_u32 m0, s{sXB}, {4096+1024*i}', ('vm', f'buffer_load_dwordx4 v{vWq}, {sr(SW,4)}, s{sCW+i} offen lds', f'wq{i}')]
    def ddma(c):
        return [f's_add_u32 m0, s{sXB}, {12288+1024*c}', f's_mov_b64 exec, {sr(sDEX,2)}',
                ('vm', f'buffer_load_dwordx4 v{vD}, {sr(SD,4)}, s{sCX+c} offen lds', f'd{c}'), 's_mov_b64 exec, -1']
    s.run(xdma(0)); s.run(xdma(1))
    s.stamp('x01')
    s(f'''v_add_u32 v{vWv}, 896, v{vWk}
s_sub_u32 s56, s{sHQ}, s{sH}
s_mul_i32 s56, s56, 56
s_sub_u32 s56, s56, 896
v_add_u32 v{vWq}, s56, v{vWk}
s_and_b32 s56, s{sW}, 1
s_lshl_b32 s57, s56, 6
v_xor_b32 v{vGw}, s57, v5
s_lshl_b32 s56, s56, 3
v_add_u32 v6, s56, v4
v_min_u32 v7, 13, v6
s_mul_i32 s57, s{sH}, 14
v_add_u32 v7, s57, v7
v_cmp_eq_u32 vcc, 15, v6
v_mov_b32 v8, 224
v_cndmask_b32 v7, v7, v8, vcc
s_movk_i32 s59, 896
v_mad_u32_u24 v{vD}, v7, s59, v{vGw}
s_cmp_lt_u32 s{sW}, 2
s_cselect_b32 s{SD}, s64, s66
s_cselect_b32 s{SD+1}, s65, s67
s_mov_b32 s{SD+2}, 401408
s_mov_b32 s{SD+3}, 0x20000
s_mov_b32 s{SGW+2}, 896
s_mov_b32 s{SGW+3}, 0x20000
s_mov_b32 s{SDBG+2}, 256
s_mov_b32 s{SDBG+3}, 0x20000
s_mov_b32 s{sDEX}, -1
s_cmp_eq_u32 s{sW}, 1
s_cselect_b32 s{sDEX+1}, 0xff00ffff, -1
s_mov_b32 s{sM28}, 0xefffffff
s_mov_b32 s{sM28+1}, 0xefffffff
s_mov_b32 s{sC}, {LOG2E}
s_mov_b32 s{sNC}, {LOG2E | 0x80000000}''')
    s(f'''v_and_b32 v4, 31, v{vL}
v_lshrrev_b32 v5, 5, v{vL}
v_bfe_u32 v6, v{vL}, 1, 3
v_xor_b32 v6, v6, v5
v_lshlrev_b32 v6, 4, v6
v_lshl_add_u32 v{vXr}, v4, 7, v6
v_add_u32 v{vXr}, s{sXB}, v{vXr}
v_xor_b32 v{vXr+1}, 32, v{vXr}
v_xor_b32 v{vXr+2}, 64, v{vXr}
v_xor_b32 v{vXr+3}, 0x60, v{vXr}
v_and_b32 v7, 7, v{vL}
v_lshl_add_u32 v6, v7, 7, v6
v_lshrrev_b32 v7, 3, v4
s_movk_i32 s59, 28672
v_mad_u32_u24 v{vDr}, v7, s59, v6
v_add_u32 v{vDr}, 12288, v{vDr}
v_xor_b32 v{vDr+1}, 32, v{vDr}
v_xor_b32 v{vDr+2}, 64, v{vDr}
v_xor_b32 v{vDr+3}, 0x60, v{vDr}
v_bfe_u32 v6, v{vL}, 4, 1
v_and_b32 v7, 3, v{vL}
v_lshl_add_u32 v6, v6, 2, v7
v_cmp_lt_u32 vcc, 5, v6
v_cndmask_b32 v6, v6, 7, vcc
v_lshlrev_b32 v6, 3, v6
v_bfe_u32 v7, v{vL}, 2, 2
v_lshl_add_u32 v6, v7, 6, v6
v_lshl_add_u32 v{vLo}, v5, 9, v6
v_add_u32 v{vMid}, 57344, v{vLo}
v_add_u32 v{vHi}, 114688, v{vLo}
v_lshl_add_u32 v{vPr}, v5, 8, v6
v_add_u32 v{vPr}, {L_PHI}, v{vPr}''')
    s(f'''v_cmp_eq_u32 vcc, 1, v5
v_mov_b32 v7, {f2h(-1e30)}
v_cndmask_b32 v{vPAD}, 0, v7, vcc''')
    consts = []
    consts += [f'v_lshlrev_b32 v6, 2, v5', f'v_sub_u32 v6, v4, v6', f'v_and_b32 v7, 1, v6', f'v_cmp_eq_u32 vcc, 1, v7',
               f'v_mov_b32 v7, 0x3f80', 'v_mov_b32 v8, 1.0', 'v_cndmask_b32 v7, v7, v8, vcc', 'v_and_b32 v6, -2, v6']
    for st in range(2):
        for j in range(4):
            c = 16 * st + 2 * (j & 1) + 8 * (j >> 1)
            consts += [f'v_cmp_eq_u32 vcc, {c}, v6', 'v_cndmask_b32 v8, 0, v7, vcc', f'v_accvgpr_write_b32 a{AI+4*st+j}, v8']
    consts += ['v_lshrrev_b32 v6, 1, v4', 'v_cvt_f32_u32 v6, v6', f'v_mul_f32 v6, {f2h(1/32)}, v6', 'v_and_b32 v7, 1, v4',
               'v_cvt_f32_u32 v7, v7', 'v_mul_f32 v7, 0.5, v7', 'v_mul_f32 v7, 0.5, v7', 'v_cvt_f32_u32 v8, v5', 'v_mul_f32 v8, 4.0, v8',
               'v_fma_f32 v7, v6, v8, v7']
    for st in range(2):
        for j in range(4):
            o = 16 * st + 2 * (j & 1) + 8 * (j >> 1)
            consts += [f'v_fmamk_f32 v8, v6, {f2h(o)}, v7', f'v_fmamk_f32 v9, v6, {f2h(o+1)}, v7',
                       f'v_cos_f32 v{T}, v8', f'v_cos_f32 v{T+1}, v9', 'v_sin_f32 v8, v8', 'v_sin_f32 v9, v9',
                       f'v_cvt_pk_bf16_f32 v{T}, v{T}, v{T+1}', 'v_cvt_pk_bf16_f32 v8, v8, v9',
                       f'v_accvgpr_write_b32 a{ATW+4*st+j}, v{T}', f'v_accvgpr_write_b32 a{ATW+8+4*st+j}, v8']
    consts += [f'v_mov_b32 v{VB+j}, 0x3f803f80' for j in range(8)]
    s.run(consts)
    s.wait(vtag='phi')
    s('s_barrier')
    s.stamp('B1')
    s(f'''s_add_u32 s56, s{sH}, 2
s_and_b32 s56, s56, 15
s_lshl_b32 s57, s{sW}, 2
s_add_u32 s56, s56, s57
s_cmp_ge_u32 s56, 4
s_cbranch_scc1 K1_NOFLAG
s_lshl_b32 s56, s{sCI}, 4
s_add_u32 s56, s56, s{sRB}
s_lshl_b32 s56, s56, 2
v_mov_b32 v6, 1
v_mov_b32 v7, s56
s_mov_b64 exec, 1
buffer_store_dword v6, v7, {sr(SDBG,4)}, 0 offen sc1
s_mov_b64 exec, -1
K1_NOFLAG:''')
    def wloc(kind, sl):
        if kind == 'k': return vHi, 1024 * sl
        if kind == 'v' and sl < 16: return vHi, 28672 + 1024 * sl
        i, w = sl >> 2, sl & 3
        a = w * 28672 + ((i - 4) * 1024 if kind == 'v' else 4096 + i * 1024)
        return (vLo, a) if w < 2 else (vMid, a - 57344)
    def wread(kind, sl):
        b, o = wloc(kind, sl); r = RING + 4 * (sl % 8)
        return [('ds', f'ds_read_b64_tr_b16 {vr(r,2)}, v{b} offset:{o}'), ('ds', f'ds_read_b64_tr_b16 {vr(r+2,2)}, v{b} offset:{o+256}', f'{kind}f{sl}')]
    def dread(sl):
        r = RING + 4 * (sl % 8)
        return [('ds', f'ds_read_b128 {vr(r,4)}, v{vDr+(sl&3)} offset:{1024*(sl>>2)}', f'df{sl}')]
    def phiread(q):
        return [('ds', f'ds_read_b64_tr_b16 {vr(WF+2*j,2)}, v{vPr} offset:{2048*q+512*j}', f'phif{q}') for j in range(4)]
    s.run(phiread(0))
    for c in range(7):
        for sl in range(4 * c, 4 * c + 4): s.run(wread('k', sl))
        if c + 2 <= 6: s.run(xdma(c + 2))
        else: s.run(wvdma(2 * (c - 5))); s.run(wvdma(2 * (c - 5) + 1))
        s.wait(vtag=f'x{c}')
        for k in range(4):
            s.ds(f'ds_read_b128 {ar(16*c+4*k,4)}, v{vXr+k} offset:{4096*c}', f'xf{4*c+k}')
        for k in range(4):
            sl = 4 * c + k
            s.wait(dtag=f'xf{sl}')
            s(mfma(vr(aK,16), vr(RING+4*(sl%8),4), ar(4*sl,4), vr(aK,16) if sl else '0'))
    s.stamp('kdone')
    s.run(wvdma(4))
    s(f'''s_lshr_b32 s56, s{sH}, 2
s_lshl_b32 s56, s56, 6
v_and_b32 v9, 15, v{vL}
v_lshlrev_b32 v9, 2, v9''')
    for j in range(8): s(f'v_cvt_pk_bf16_f32 v{KB+j}, v{aK+2*j}, v{aK+2*j+1}')
    s(mfma(vr(P,16), vr(WF,4), vr(KB,4), '0'))
    s(mfma(vr(P,16), vr(WF+4,4), vr(KB+4,4), vr(P,16)))
    s.run(wvdma(5)); s.run(wvdma(6))
    s.vm(f'buffer_load_dword v8, v9, {sr(SDBG,4)}, s56 offen sc1', 'flags')
    sm = softmax_items(P, EM, PH, T, sC, sNC, vPAD)
    def gemm_groups(kind, lo, hi, acc, xfirst, pre=4):
        g = []
        head = []
        for sl in range(lo, min(lo + pre, hi)): head += (wread(kind, sl) if kind != 'd' else dread(sl))
        for sl in range(lo, hi):
            it = []
            if sl == lo: it += head
            it.append(('wl', f'{kind}f{sl}'))
            w = vr(RING + 4 * (sl % 8), 4); x = ar(4 * sl, 4)
            it.append(mfma(vr(acc,16), x if xfirst else w, w if xfirst else x, vr(acc,16) if sl else '0'))
            if sl + pre < hi: it += (wread(kind, sl + pre) if kind != 'd' else dread(sl + pre))
            g.append(it)
        return g
    n1 = cfg.get('sm_pre', 24)
    n2 = cfg.get('sm_mid', 100)
    s.run(sm[:n1])
    s.run(wqdma(0))
    s.wait(vtag='wv3'); s('s_barrier')
    s.stamp('Bv1')
    g1 = gemm_groups('v', 0, 16, aV, True)
    s.run(spread(g1, sm[n1:n2]))
    s.run(wqdma(1)); s.run(wqdma(2))
    s.wait(vtag='wv6'); s('s_barrier')
    s.stamp('Bv2')
    g2 = gemm_groups('v', 16, 28, aV, True)
    s.run(spread(g2, sm[n2:]))
    s.run(wqdma(3)); s.run(wqdma(4))
    s.stamp('smk')
    s(mfma(vr(T,16), vr(PH,4), ar(AI,4), '0')); s(mfma(vr(T+16,16), vr(PH+8,4), ar(AI,4), '0'))
    s(mfma(vr(T,16), vr(PH+4,4), ar(AI+4,4), vr(T,16))); s(mfma(vr(T+16,16), vr(PH+12,4), ar(AI+4,4), vr(T+16,16)))
    s(f's_mov_b64 exec, {sr(sM28,2)}')
    for j in range(8): s(f'v_cvt_pk_bf16_f32 v{VB+j}, v{aV+2*j}, v{aV+2*j+1}')
    s('s_mov_b64 exec, -1')
    s.run(wqdma(5)); s.run(wqdma(6))
    for j in range(16): s(f'v_cvt_pk_bf16_f32 v{EM+j}, v{T+2*j}, v{T+2*j+1}')
    s(mfma(vr(KV,16), vr(EM,4), vr(VB,4), '0')); s(mfma(vr(KV+16,16), vr(EM+8,4), vr(VB,4), '0'))
    s(mfma(vr(KV,16), vr(EM+4,4), vr(VB+4,4), vr(KV,16))); s(mfma(vr(KV+16,16), vr(EM+12,4), vr(VB+4,4), vr(KV+16,16)))
    s(f'''v_lshlrev_b32 v3, 4, v{vL}
v_add_u32 v4, s{sXB}, v3
s_lshl_b32 s57, s{sW}, 11
v_add_u32 v5, s57, v3
v_add_u32 v6, 57344, v5
s_lshl_b32 s57, s{sW}, 4
s_or_b32 s57, s57, s{sH}
s_cmp_lg_u32 s57, 16
s_cbranch_scc1 K1_NOGATE
s_mov_b32 exec_lo, 0
s_mov_b32 exec_hi, 0x00ff0000''')
    for c in range(7):
        s(f's_add_u32 m0, s{sXB}, {12288+1024*c}\nbuffer_load_dwordx4 v{vGw}, {sr(SGW,4)}, s{sCX+c} offen lds')
    s('s_mov_b64 exec, -1\nK1_NOGATE:')
    for ks in range(4):
        for hh in range(2):
            s.ds(f'ds_write_b128 v4, {vr(KV+8*ks+4*hh,4)} offset:{20480+2048*ks+1024*hh}')
    s.run(ddma(0)); s.run(ddma(1))
    s.wait(dtag='all'); s('s_barrier')
    s.stamp('Bkv')
    for w in range(4):
        for hh in range(2):
            b, o = (5, w * 28672) if w < 2 else (6, (w - 2) * 28672)
            s.ds(f'ds_read_b128 {vr(T+8*w+4*hh,4)}, v{b} offset:{o+20480+1024*hh}', f'kvr{w}')
    s(f'''s_lshl_b32 s57, s{sH}, 4
s_add_u32 s57, s57, s{sRB}
s_lshl_b32 s57, s57, 2
s_add_u32 s57, s57, s{sW}
s_lshl_b32 s57, s57, 10
s_add_u32 s57, s57, {WS_P}''')
    s.wait(dtag='kvr1')
    for j in range(8): s(f'v_add_f32 v{T+j}, v{T+j}, v{T+8+j}')
    s.wait(dtag='kvr3')
    for j in range(8): s(f'v_add_f32 v{T+16+j}, v{T+16+j}, v{T+24+j}')
    for j in range(8): s(f'v_add_f32 v{T+j}, v{T+j}, v{T+16+j}')
    for j in range(4): s(f'v_cvt_pk_bf16_f32 v{T+8+j}, v{T+2*j}, v{T+2*j+1}')
    s.wait(vtag='flags')
    s(f'''v_cmp_ne_u32 vcc, 1, v8
s_cbranch_vccz K1_FLAGOK
s_movk_i32 s58, 2000
K1_FLAGSPIN:
buffer_load_dword v8, v9, {sr(SDBG,4)}, s56 offen sc1
s_sub_u32 s58, s58, 1
s_waitcnt vmcnt(0)
s_cmp_eq_u32 s58, 0
s_cbranch_scc1 K1_FLAGOK
v_cmp_ne_u32 vcc, 1, v8
s_cbranch_vccnz K1_FLAGSPIN
K1_FLAGOK:''')
    s.vm(f'buffer_store_dwordx4 {vr(T+8,4)}, v3, {sr(SWS,4)}, s57 offen sc1', 'pub')
    s.stamp('pub')
    for c in range(2, 7): s.run(ddma(c))
    s.run(phiread(1))
    s.wait(vtag='wq6'); s('s_barrier')
    s.stamp('Bq')
    s.run(gemm_groups('q', 0, 28, aQ, False))
    for j in range(8): s(f'v_cvt_pk_bf16_f32 v{KB+j}, v{aQ+2*j}, v{aQ+2*j+1}')
    s(mfma(vr(P,16), vr(WF,4), vr(KB,4), '0'))
    s(mfma(vr(P,16), vr(WF+4,4), vr(KB+4,4), vr(P,16)))
    s.wait(vtag='d6'); s('s_barrier')
    s.stamp('Bd')
    GB = T
    s(f'''s_lshl_b32 s57, s{sHQ}, 6
s_add_u32 s57, s57, s{sW}
s_lshl_b32 s57, s57, 10
s_add_u32 s57, s57, {WS_P}
v_add_u32 v7, s57, v3
s_lshl_b32 s{sP}, s{sRB}, 12''')
    def gload(p):
        return [('vm', f'buffer_load_dwordx4 {vr(GB+4*p,4)}, v7, {sr(SWS,4)}, s{sP} offen sc1', f'g{p}'),
                f's_add_u32 s{sP}, s{sP}, 4096', f's_and_b32 s{sP}, s{sP}, 0xf000']
    TT = 64
    sm = softmax_items(P, EM, PH, TT, sC, sNC, vPAD)
    gd = gemm_groups('d', 0, 28, aD, True)
    fill = list(sm)
    gpos = cfg.get('gpos', 60); gstep = cfg.get('gstep', 6)
    for p in range(16): fill.insert(min(len(fill), gpos + p * (gstep + 1)), gload(p))
    s.run(spread(gd, fill))
    s.stamp('smq')
    s(f'''s_cmp_lg_u32 s{sH}, 0
s_cbranch_scc1 K1_NOGST
v_lshrrev_b32 v4, 5, v{vL}
v_lshlrev_b32 v4, 4, v4
s_lshl_b32 s57, s{sBETA}, 7
s_add_u32 s57, s57, {WS_G}
s_mov_b32 exec_lo, 0x4000
s_mov_b32 exec_hi, 0x4000''')
    for q in range(4): s(f'buffer_store_dwordx4 {vr(aD+4*q,4)}, v4, {sr(SWS,4)}, s57 offen offset:{32*q}')
    s('s_mov_b64 exec, -1\nK1_NOGST:')
    PK, QK, UA, UP = KB, WF, aK, aV
    for j in range(8): s(f'v_cvt_pk_bf16_f32 v{PK+j}, v{aD+2*j}, v{aD+2*j+1}')
    for j in range(8): s(f'v_xor_b32 v{QK+j}, 0x80000000, v{PK+j}')
    for j in range(8): s(f'v_permlane16_swap_b32 v{PK+j}, v{QK+j}')
    s(mfma(vr(UA,16), ar(ATW,4), vr(PK,4), '0')); s(mfma(vr(UA,16), ar(ATW+4,4), vr(PK+4,4), vr(UA,16)))
    s(mfma(vr(UA,16), ar(ATW+8,4), vr(QK,4), vr(UA,16))); s(mfma(vr(UA,16), ar(ATW+12,4), vr(QK+4,4), vr(UA,16)))
    s(f'''s_lshl_b32 s57, s{sW}, 2
s_add_u32 s57, s57, {L_UX}
v_add_u32 v4, s57, v3
s_lshl_b32 s57, s{sW}, 11
s_add_u32 s57, s57, {L_UX}
v_add_u32 v5, s57, v3
v_and_b32 v6, 15, v{vL}
s_mul_i32 s57, s{sH}, 14
v_add_u32 v8, s57, v6
v_cmp_eq_u32 vcc, 15, v6
v_mov_b32 v9, 224
v_cndmask_b32 v8, v8, v9, vcc
v_lshlrev_b32 v8, 4, v8
v_bfe_u32 v9, v{vL}, 4, 1
v_lshl_add_u32 v8, v9, 20, v8
v_lshrrev_b32 v9, 5, v{vL}
v_lshl_add_u32 v8, v9, 17, v8
s_lshl_b32 s57, s{sW}, 18
s_lshl_b32 s58, s{sRB}, 12
s_add_u32 s57, s57, s58
s_add_u32 s57, s57, {WS_U}
s_add_u32 s58, s57, 65536
s_cmp_eq_u32 s{sH}, 0
s_cselect_b32 s64, 0x80008000, 0
s_or_b32 s64, s64, 0x3fff3fff
s_mov_b32 s65, s64''')
    for i in range(8): s(f'v_cvt_pk_bf16_f32 v{UP+i}, v{UA+2*i}, v{UA+2*i+1}')
    for i in range(8): s.ds(f'ds_write_b32 v4, v{UP+i} offset:{1024*i}')
    s.wait(dtag='all'); s('s_barrier')
    s.ds(f'ds_read_b128 {vr(UP+8,4)}, v5', 'u0'); s.ds(f'ds_read_b128 {vr(UP+12,4)}, v5 offset:1024', 'u1')
    s.stamp('Bu')
    SUM = EM
    s(f'v_mov_b32 v4, 0x3f80\nv_mov_b32 v5, 1.0')
    s.wait(dtag='u1')
    s('s_mov_b64 exec, s[64:65]')
    s.vm(f'buffer_store_dwordx4 {vr(UP+8,4)}, v8, {sr(SWS,4)}, s57 offen')
    s.vm(f'buffer_store_dwordx4 {vr(UP+12,4)}, v8, {sr(SWS,4)}, s58 offen')
    s('s_mov_b64 exec, -1')
    s('s_movk_i32 s59, 200')
    s.wait(vtag='g15')
    s('K1_GCHK:')
    s(f'v_max3_u32 v6, v{GB}, v{GB+1}, v{GB+2}\nv_max3_u32 v9, v{GB+3}, v{GB+4}, v{GB+5}')
    regs_ = list(range(GB + 6, GB + 64))
    k = 0
    while regs_:
        a_, b_ = regs_.pop(0), regs_.pop(0)
        t = 6 if k % 2 == 0 else 9
        s(f'v_max3_u32 v{t}, v{t}, v{a_}, v{b_}'); k += 1
    s(f'''v_max_u32 v6, v6, v9
v_cmp_eq_u32 vcc, -1, v6
s_cbranch_vccz K1_GOK
s_sub_u32 s59, s59, 1
s_cmp_eq_u32 s59, 0
s_cbranch_scc1 K1_GOK''')
    for p in range(16):
        s(f'buffer_load_dwordx4 {vr(GB+4*p,4)}, v7, {sr(SWS,4)}, s{sP} offen sc1\ns_add_u32 s{sP}, s{sP}, 4096\ns_and_b32 s{sP}, s{sP}, 0xf000')
    s('s_waitcnt vmcnt(0)\ns_branch K1_GCHK\nK1_GOK:')
    s.stamp('gok')
    for p in range(16):
        for j in range(4):
            for hh in range(2):
                acc = f'v{SUM+2*j+hh}'
                s(f'v_dot2_f32_bf16 {acc}, v{GB+4*p+j}, v{4+hh}, {acc if p else 0}')
    s(f'''s_lshl_b32 s57, s{sW}, 10
s_add_u32 s57, s57, {L_KX}
v_add_u32 v6, s57, v3
v_add_u32 v9, {L_KX}, v3''')
    for j in range(4): s(f'v_cvt_pk_bf16_f32 v{SUM+8+j}, v{SUM+2*j}, v{SUM+2*j+1}')
    s.ds(f'ds_write_b128 v6, {vr(SUM+8,4)}')
    s(f'''s_mul_i32 s57, s{sHQ}, 7
v_lshrrev_b32 v4, 5, v{vL}
v_add_u32 v4, s57, v4
v_lshrrev_b32 v5, 1, v4
v_and_b32 v4, 1, v4
v_lshlrev_b32 v4, 3, v4
v_lshl_add_u32 v4, v5, 9, v4
v_and_b32 v5, 31, v{vL}
v_lshl_add_u32 v4, v5, 4, v4
s_mul_i32 s57, s{sBETA}, 28672''')
    s.wait(dtag='all'); s('s_barrier')
    for ks in range(4): s.ds(f'ds_read_b128 {vr(RING+4*ks,4)}, v9 offset:{1024*ks}', f'kx{ks}')
    for ks in range(4):
        s.wait(dtag=f'kx{ks}')
        s(mfma(vr(P,16), vr(RING+4*ks,4), vr(PH+4*ks,4), vr(P,16) if ks else '0'))
    s(f'''v_mov_b32 v5, v{P+12}
v_mov_b32 v6, v{P+12}
v_permlane32_swap_b32 v5, v6
v_add_f32 v6, {f2h(1e-6)}, v6
v_rcp_f32 v6, v6''')
    for q in range(4):
        for r in range(4 * q, 4 * q + 4): s(f'v_mul_f32 v{P+r}, v{P+r}, v6')
        s(f'v_cvt_pk_bf16_f32 v{EM+2*q}, v{P+4*q}, v{P+4*q+1}\nv_cvt_pk_bf16_f32 v{EM+2*q+1}, v{P+4*q+2}, v{P+4*q+3}')
        if q == 3: s('s_mov_b32 exec_hi, 0')
        s.vm(f'buffer_store_dwordx2 {vr(EM+2*q,2)}, v4, {sr(SWS,4)}, s57 offen offset:{512*q}')
    s.stamp('end')
    if s.stamp_on:
        s('s_mov_b64 exec, -1\ns_waitcnt vmcnt(0)')
        s.stamp('drain')
        s(f's_lshl_b32 s58, s2, 2\ns_add_u32 s58, s58, s{sW}')
        stamp_store(s, SWS, 58, 4)
    s('K1_END:\ns_endpgm')
    return s

def build(cfg, only=None):
    from gen_k2 import gen_k2
    k1 = gen_k1(cfg); k2 = gen_k2(cfg)
    ks = [dict(name=K1N, asm=k1.a, grid=256, block=256, lds=163840, vgpr=256, agpr=136, aslist=True),
          dict(name=K2N, asm=k2.a, grid=224, block=256, lds=131072, vgpr=cfg.get('k2v', 160), agpr=0, aslist=True)]
    if only is not None: ks = [ks[i] for i in only]
    return build_file(ks), k1, k2

if __name__ == '__main__':
    import json
    cfg = json.loads(sys.argv[2]) if len(sys.argv) > 2 else {}
    txt, k1, k2 = build(cfg)
    open(sys.argv[1], 'w').write(txt)
    print('k1 instrs', k1.a.count, 'nops', k1.a.nops, 'k2', k2.a.count, k2.a.nops)
    print('stamps', k1.stamps, k2.stamps)
```

```python
import sys
sys.path.insert(0, 'work')
from gen_lib import *
from gen_k import *

def gen_k2(cfg):
    s = Sched(); s.stamp_on = cfg.get('stamps', False); s.stamp_base = 68
    sW, sCL, sJ, sTT, sCB, sBP, sMW, sMO = 3, 4, 5, 6, 7, 8, 9, 10
    SWO, SWS, SOUT = 12, 16, 20
    sCO, sCW = 40, 48
    vL = 1
    vWo, vO, vU, vG, vWr, vOr, vUr, vT, vTb, vOut = 10, 11, 12, 13, 14, 15, 16, 17, 18, 19
    WR, OR_, TW, aB, aY, UF = 20, 52, 84, 116, 132, 20
    L_O, L_U = 57344, 114688
    s('s_cmp_ge_u32 s2, 224\ns_cbranch_scc1 K2_END')
    s.stamp('start')
    s(f'''s_load_dwordx2 {sr(SWS,2)}, s[0:1], 96
s_load_dwordx2 {sr(SWO,2)}, s[0:1], 64
s_load_dwordx2 {sr(SOUT,2)}, s[0:1], 80
v_lshrrev_b32 v4, 6, v0
v_and_b32 v{vL}, 63, v0
s_and_b32 s56, s2, 7
v_readfirstlane_b32 s{sW}, v4
s_lshr_b32 s57, s2, 3
s_lshl_b32 s{sCL}, s56, 2
s_and_b32 s58, s57, 3
s_add_u32 s{sCL}, s{sCL}, s58
s_lshr_b32 s{sJ}, s57, 2
s_lshl_b32 s58, s58, 1
s_add_u32 s58, s58, s{sJ}
s_cmp_ge_u32 s58, 7
s_cselect_b32 s59, 7, 0
s_sub_u32 s58, s58, s59
s_lshr_b32 s{sTT}, s{sW}, 1
s_and_b32 s{sCB}, s{sW}, 1
s_lshl_b32 s{sBP}, s{sTT}, 5
s_add_u32 s{sBP}, s{sBP}, s{sCL}
s_mov_b32 s{SWS+2}, {WS_N}
s_mov_b32 s{SWS+3}, 0x20000
s_mov_b32 s{SWO+2}, 401408
s_mov_b32 s{SWO+3}, 0x20000
s_mov_b32 s{SOUT+2}, {2048*896}
s_mov_b32 s{SOUT+3}, 0x20000
v_lshlrev_b32 v3, 4, v{vL}
v_and_b32 v4, 31, v{vL}
v_lshrrev_b32 v5, 5, v{vL}''')
    s(f'''s_lshl_b32 s56, s{sJ}, 1
s_add_u32 s56, s56, s{sCB}
s_lshl_b32 s60, s56, 5
v_add_u32 v6, s60, v4
v_sub_u32 v7, 448, v6
s_sub_u32 s57, 32, s{sCL}
s_and_b32 s57, s57, 31
s_cmp_ge_u32 s56, 7
s_cselect_b32 s57, s57, s{sCL}
s_cselect_b64 vcc, -1, 0
s_cselect_b32 s61, 0x80000000, 0
s_or_b32 s61, s61, {f2h(1/2048)}
v_cndmask_b32 v6, v6, v7, vcc
v_lshlrev_b32 v6, 4, v6
v_lshl_add_u32 v{vU}, v5, 12, v6
s_lshl_b32 s57, s57, 16
s_lshl_b32 s59, s{sTT}, 15
s_add_u32 s57, s57, s59
s_add_u32 s57, s57, {WS_U}
s_lshl_b32 s59, s{sCB}, 13
s_lshl_b32 s62, s{sTT}, 12
s_add_u32 s59, s59, s62
s_add_u32 s59, s59, {L_U}
s_lshl_b32 s62, s{sBP}, 7
s_add_u32 s62, s62, {WS_G}
v_lshlrev_b32 v7, 2, v4
s_waitcnt lgkmcnt(0)''')
    s.stamp('karg')
    s.vm(f'buffer_load_dword v{vG}, v7, {sr(SWS,4)}, s62 offen', 'g')
    for k in range(4):
        s(f's_add_u32 m0, s59, {1024*k}')
        s.vm(f'buffer_load_dwordx4 v{vU}, {sr(SWS,4)}, s57 offen lds', 'u')
        if k < 3: s('s_add_u32 s57, s57, 8192')
    for i in range(7):
        s(f's_lshl_b32 s{sCO+i}, s58, 12\ns_mul_i32 s{sCW+i}, s58, 57344')
        if i < 6: s('s_add_u32 s58, s58, 1\ns_cmp_eq_u32 s58, 7\ns_cselect_b32 s58, 0, s58')
    s(f'''v_lshrrev_b32 v6, 3, v{vL}
v_and_b32 v7, 7, v{vL}
v_bfe_u32 v8, v{vL}, 4, 1
v_lshlrev_b32 v8, 2, v8
v_xor_b32 v7, v7, v8
v_lshlrev_b32 v7, 4, v7
s_movk_i32 s59, 896
v_mad_u32_u24 v{vWo}, v6, s59, v7
s_mul_i32 s56, s{sW}, {16*896}
s_lshl_b32 s57, s{sJ}, 7
s_add_u32 s56, s56, s57
v_add_u32 v{vWo}, s56, v{vWo}
v_add_u32 v2, {8*896-1024}, v{vWo}
s_mul_i32 s56, s{sBP}, 28672
s_lshl_b32 s57, s{sCB}, 11
s_add_u32 s56, s56, s57
v_add_u32 v{vO}, s56, v3
s_lshl_b32 s{sMW}, s{sW}, 11
s_mul_i32 s{sMO}, s{sTT}, 28672
s_add_u32 s{sMO}, s{sMO}, s57
s_add_u32 s{sMO}, s{sMO}, {L_O}''')
    def dma(i):
        return [f's_add_u32 m0, s{sMO}, {4096*i}',
                ('vm', f'buffer_load_dwordx4 v{vO}, {sr(SWS,4)}, s{sCO+i} offen lds'),
                ('vm', f'buffer_load_dwordx4 v{vO}, {sr(SWS,4)}, s{sCO+i} offen offset:1024 lds'),
                f's_add_u32 m0, s{sMW}, {8192*i}',
                ('vm', f'buffer_load_dwordx4 v{vWo}, {sr(SWO,4)}, s{sCW+i} offen lds'),
                ('vm', f'buffer_load_dwordx4 v2, {sr(SWO,4)}, s{sCW+i} offen offset:1024 lds', f'c{i}')]
    s.run(dma(0))
    s(f'''v_bfe_u32 v6, v{vL}, 2, 2
v_lshl_add_u32 v7, v5, 3, v6
v_lshlrev_b32 v7, 7, v7
v_lshrrev_b32 v6, 1, v6
v_xor_b32 v6, s{sCB}, v6
v_lshl_add_u32 v7, v6, 6, v7
v_bfe_u32 v6, v{vL}, 4, 1
v_lshl_add_u32 v7, v6, 5, v7
v_and_b32 v6, 3, v{vL}
v_lshl_add_u32 v{vWr}, v6, 3, v7
s_mul_i32 s56, s{sTT}, 28672
s_add_u32 s56, s56, {L_O}
v_add_u32 v{vOr}, s56, v3
s_lshl_b32 s56, s{sCB}, 13
s_add_u32 s56, s56, {L_U}
v_add_u32 v{vUr}, s56, v3
v_lshlrev_b32 v6, 6, v4
v_add_u32 v6, s{sBP}, v6
v_cvt_f32_u32 v7, v6
v_mul_f32 v{vT}, s61, v7
v_cvt_f32_u32 v7, v5
v_mul_f32 v7, 4.0, v7
v_mul_f32 v{vTb}, v7, v{vT}
s_movk_i32 s59, 896
v_lshlrev_b32 v7, 4, v5
v_mad_u32_u24 v{vOut}, v6, s59, v7
s_lshl_b32 s60, s60, 1''')
    s.run(dma(1))
    tw = []
    for ks in range(8):
        for j in range(4):
            tw += [f'v_fmamk_f32 v6, v{vT}, {f2h(8*ks+j)}, v{vTb}', 'v_cos_f32 v7, v6', 'v_sin_f32 v6, v6',
                   f'v_cvt_pk_bf16_f32 v{TW+4*ks+j}, v7, v6']
    s.run(tw[:64]); s.run(dma(2)); s.run(tw[64:])
    s.stamp('tw')
    s.wait(vtag='u')
    s(f'''v_mul_f32 v6, {hex(LOG2E | 0x80000000)}, v{vG}
v_exp_f32 v6, v6
s_barrier''')
    for ks in range(8): s.ds(f'ds_read_b128 {vr(UF+4*ks,4)}, v{vUr} offset:{1024*ks}', f'uf{ks}')
    s(f'''v_add_f32 v7, 1.0, v6
v_rcp_f32 v{vG}, v7''')
    s(f'v_sub_f32 v9, 1.0, v{vG}')
    for ks in range(8):
        s.wait(dtag=f'uf{ks}')
        s(mfma(vr(aY,16), vr(UF+4*ks,4), vr(TW+4*ks,4), vr(aY,16) if ks else '0'))
    s.stamp('st2')
    for c in range(7):
        if c + 3 <= 6: s.run(dma(c + 3))
        s.wait(vtag=f'c{c}'); s('s_barrier')
        for k in range(4):
            sl = 4 * c + k; r = 4 * (sl % 8)
            s.ds(f'ds_read_b64_tr_b16 {vr(WR+r,2)}, v{vWr} offset:{2048*sl}')
            s.ds(f'ds_read_b64_tr_b16 {vr(WR+r+2,2)}, v{vWr} offset:{2048*sl+512}')
            s.ds(f'ds_read_b128 {vr(OR_+r,4)}, v{vOr} offset:{1024*sl}', f'f{sl}')
        if c == 1:
            for r in range(16): s(f'v_mul_f32 v{aY+r}, v{aY+r}, v{vG}')
        for k in range(4):
            sl = 4 * c + k; r = 4 * (sl % 8)
            s.wait(dtag=f'f{sl}')
            s(mfma(vr(aB,16), vr(WR+r,4), vr(OR_+r,4), vr(aB,16) if sl else '0'))
    s.stamp('gemm')
    for Q in range(2):
        for r in range(8 * Q, 8 * Q + 8): s(f'v_fma_f32 v{aB+r}, v{aB+r}, v9, v{aY+r}')
        for j in range(4 * Q, 4 * Q + 4): s(f'v_cvt_pk_bf16_f32 v{TW+j}, v{aB+2*j}, v{aB+2*j+1}')
        s(f'v_permlane32_swap_b32 v{TW+4*Q}, v{TW+4*Q+2}\nv_permlane32_swap_b32 v{TW+4*Q+1}, v{TW+4*Q+3}')
        s.vm(f'buffer_store_dwordx4 {vr(TW+4*Q,4)}, v{vOut}, {sr(SOUT,4)}, s60 offen offset:{32*Q}')
    s.stamp('end')
    if s.stamp_on:
        s('s_waitcnt vmcnt(0)')
        s.stamp('drain')
        s(f's_lshl_b32 s58, s2, 2\ns_add_u32 s58, s58, s{sW}\ns_add_u32 s58, s58, 1024')
        stamp_store(s, SWS, 58, 4)
        if cfg.get('dbgst') is not None:
            s(f'''s_waitcnt vmcnt(0)
s_cmp_lg_u32 s58, {1024 + 4*cfg['dbgst']}
s_cbranch_scc1 K2_END
s_load_dwordx2 s[24:25], s[0:1], 88
s_mov_b32 s26, 256
s_mov_b32 s27, 0x20000
s_mov_b64 exec, 0xffff
v_lshlrev_b32 v4, 2, v{vL}
v_add_u32 v5, {WS_ST + 512*cfg['dbgst']}, v4
v_mov_b32 v8, {WS_ST + 512*cfg['dbgst']}
buffer_load_dword v6, v5, {sr(SWS,4)}, 0 offen offset:4 sc1
buffer_load_dword v7, v8, {sr(SWS,4)}, 0 offen sc1
s_waitcnt vmcnt(0) lgkmcnt(0)
v_writelane_b32 v6, s68, 14
v_writelane_b32 v6, s{68+2*(len(s.stamps)-1)}, 15
v_sub_u32 v6, v6, v7
buffer_store_dword v6, v4, s[24:27], 0 offen
''')
    s('K2_END:\ns_endpgm')
    return s
```

```python
import sys
sys.path.insert(0, 'work')
from gen_lib import *
from gen_k import *

def gen_k2(cfg):
    s = Sched(); s.stamp_on = cfg.get('stamps', False); s.stamp_base = 68
    sW, sCL, sJ, sTT, sCB, sBP, sMW, sMO = 3, 4, 5, 6, 7, 8, 9, 10
    SWO, SWS, SOUT = 12, 16, 20
    sCO, sCW = 40, 48
    vL = 1
    vWo, vO, vU, vG, vWr, vOr, vUr, vT, vTb, vOut = 10, 11, 12, 13, 14, 15, 16, 17, 18, 19
    WR, OR_, TW, aB, aY, UF = 20, 52, 84, 116, 132, 20
    L_O, L_U = 57344, 114688
    s('s_cmp_ge_u32 s2, 224\ns_cbranch_scc1 K2_END')
    s.stamp('start')
    s(f'''s_load_dwordx2 {sr(SWS,2)}, s[0:1], 96
s_load_dwordx2 {sr(SWO,2)}, s[0:1], 64
s_load_dwordx2 {sr(SOUT,2)}, s[0:1], 80
v_lshrrev_b32 v4, 6, v0
v_and_b32 v{vL}, 63, v0
s_and_b32 s56, s2, 7
v_readfirstlane_b32 s{sW}, v4
s_lshr_b32 s57, s2, 3
s_lshl_b32 s{sCL}, s56, 2
s_and_b32 s58, s57, 3
s_add_u32 s{sCL}, s{sCL}, s58
s_lshr_b32 s{sJ}, s57, 2
s_lshl_b32 s58, s58, 1
s_add_u32 s58, s58, s{sJ}
s_cmp_ge_u32 s58, 7
s_cselect_b32 s59, 7, 0
s_sub_u32 s58, s58, s59
s_lshr_b32 s{sTT}, s{sW}, 1
s_and_b32 s{sCB}, s{sW}, 1
s_lshl_b32 s{sBP}, s{sTT}, 5
s_add_u32 s{sBP}, s{sBP}, s{sCL}
s_mov_b32 s{SWS+2}, {WS_N}
s_mov_b32 s{SWS+3}, 0x20000
s_mov_b32 s{SWO+2}, 401408
s_mov_b32 s{SWO+3}, 0x20000
s_mov_b32 s{SOUT+2}, {2048*896}
s_mov_b32 s{SOUT+3}, 0x20000
v_lshlrev_b32 v3, 4, v{vL}
v_and_b32 v4, 31, v{vL}
v_lshrrev_b32 v5, 5, v{vL}''')
    s(f'''s_lshl_b32 s56, s{sJ}, 1
s_add_u32 s56, s56, s{sCB}
s_lshl_b32 s60, s56, 5
v_add_u32 v6, s60, v4
v_sub_u32 v7, 448, v6
s_sub_u32 s57, 32, s{sCL}
s_and_b32 s57, s57, 31
s_cmp_ge_u32 s56, 7
s_cselect_b32 s57, s57, s{sCL}
s_cselect_b64 vcc, -1, 0
s_cselect_b32 s61, 0x80000000, 0
s_or_b32 s61, s61, {f2h(1/2048)}
v_cndmask_b32 v6, v6, v7, vcc
v_lshlrev_b32 v6, 4, v6
v_lshl_add_u32 v{vU}, v5, 12, v6
s_lshl_b32 s57, s57, 16
s_lshl_b32 s59, s{sTT}, 15
s_add_u32 s57, s57, s59
s_add_u32 s57, s57, {WS_U}
s_lshl_b32 s59, s{sCB}, 13
s_lshl_b32 s62, s{sTT}, 12
s_add_u32 s59, s59, s62
s_add_u32 s59, s59, {L_U}
s_lshl_b32 s62, s{sBP}, 7
s_add_u32 s62, s62, {WS_G}
v_lshlrev_b32 v7, 2, v4
s_waitcnt lgkmcnt(0)''')
    s.stamp('karg')
    s.vm(f'buffer_load_dword v{vG}, v7, {sr(SWS,4)}, s62 offen', 'g')
    for k in range(4):
        s(f's_add_u32 m0, s59, {1024*k}')
        s.vm(f'buffer_load_dwordx4 v{vU}, {sr(SWS,4)}, s57 offen lds', 'u')
        if k < 3: s('s_add_u32 s57, s57, 8192')
    for i in range(7):
        s(f's_lshl_b32 s{sCO+i}, s58, 12\ns_mul_i32 s{sCW+i}, s58, 57344')
        if i < 6: s('s_add_u32 s58, s58, 1\ns_cmp_eq_u32 s58, 7\ns_cselect_b32 s58, 0, s58')
    s(f'''v_lshrrev_b32 v6, 3, v{vL}
v_and_b32 v7, 7, v{vL}
v_bfe_u32 v8, v{vL}, 4, 1
v_lshlrev_b32 v8, 2, v8
v_xor_b32 v7, v7, v8
v_lshlrev_b32 v7, 4, v7
s_movk_i32 s59, 896
v_mad_u32_u24 v{vWo}, v6, s59, v7
s_mul_i32 s56, s{sW}, {16*896}
s_lshl_b32 s57, s{sJ}, 7
s_add_u32 s56, s56, s57
v_add_u32 v{vWo}, s56, v{vWo}
v_add_u32 v2, {8*896-1024}, v{vWo}
s_mul_i32 s56, s{sBP}, 28672
s_lshl_b32 s57, s{sCB}, 11
s_add_u32 s56, s56, s57
v_add_u32 v{vO}, s56, v3
s_lshl_b32 s{sMW}, s{sW}, 11
s_mul_i32 s{sMO}, s{sTT}, 28672
s_add_u32 s{sMO}, s{sMO}, s57
s_add_u32 s{sMO}, s{sMO}, {L_O}''')
    def dma(i):
        return [f's_add_u32 m0, s{sMO}, {4096*i}',
                ('vm', f'buffer_load_dwordx4 v{vO}, {sr(SWS,4)}, s{sCO+i} offen lds'),
                ('vm', f'buffer_load_dwordx4 v{vO}, {sr(SWS,4)}, s{sCO+i} offen offset:1024 lds'),
                f's_add_u32 m0, s{sMW}, {8192*i}',
                ('vm', f'buffer_load_dwordx4 v{vWo}, {sr(SWO,4)}, s{sCW+i} offen lds'),
                ('vm', f'buffer_load_dwordx4 v2, {sr(SWO,4)}, s{sCW+i} offen offset:1024 lds', f'c{i}')]
    s.run(dma(0))
    s(f'''v_bfe_u32 v6, v{vL}, 2, 2
v_lshl_add_u32 v7, v5, 3, v6
v_lshlrev_b32 v7, 7, v7
v_lshrrev_b32 v6, 1, v6
v_xor_b32 v6, s{sCB}, v6
v_lshl_add_u32 v7, v6, 6, v7
v_bfe_u32 v6, v{vL}, 4, 1
v_lshl_add_u32 v7, v6, 5, v7
v_and_b32 v6, 3, v{vL}
v_lshl_add_u32 v{vWr}, v6, 3, v7
s_mul_i32 s56, s{sTT}, 28672
s_add_u32 s56, s56, {L_O}
v_add_u32 v{vOr}, s56, v3
s_lshl_b32 s56, s{sCB}, 13
s_add_u32 s56, s56, {L_U}
v_add_u32 v{vUr}, s56, v3
v_lshlrev_b32 v6, 6, v4
v_add_u32 v6, s{sBP}, v6
v_cvt_f32_u32 v7, v6
v_mul_f32 v{vT}, s61, v7
v_cvt_f32_u32 v7, v5
v_mul_f32 v7, 4.0, v7
v_mul_f32 v{vTb}, v7, v{vT}
s_movk_i32 s59, 896
v_lshlrev_b32 v7, 4, v5
v_mad_u32_u24 v{vOut}, v6, s59, v7
s_lshl_b32 s60, s60, 1''')
    s.run(dma(1))
    tw = []
    for ks in range(8):
        for j in range(4):
            tw += [f'v_fmamk_f32 v6, v{vT}, {f2h(8*ks+j)}, v{vTb}', 'v_cos_f32 v7, v6', 'v_sin_f32 v6, v6',
                   f'v_cvt_pk_bf16_f32 v{TW+4*ks+j}, v7, v6']
    s.run(tw[:64]); s.run(dma(2)); s.run(tw[64:])
    s.stamp('tw')
    s.wait(vtag='u')
    s(f'''v_mul_f32 v6, {hex(LOG2E | 0x80000000)}, v{vG}
v_exp_f32 v6, v6
s_barrier''')
    for ks in range(8): s.ds(f'ds_read_b128 {vr(UF+4*ks,4)}, v{vUr} offset:{1024*ks}', f'uf{ks}')
    s(f'''v_add_f32 v7, 1.0, v6
v_rcp_f32 v{vG}, v7''')
    s(f'v_sub_f32 v9, 1.0, v{vG}')
    for ks in range(8):
        s.wait(dtag=f'uf{ks}')
        s(mfma(vr(aY,16), vr(UF+4*ks,4), vr(TW+4*ks,4), vr(aY,16) if ks else '0'))
    s.stamp('st2')
    for c in range(7):
        if c + 3 <= 6: s.run(dma(c + 3))
        s.wait(vtag=f'c{c}'); s('s_barrier')
        for k in range(4):
            sl = 4 * c + k; r = 4 * (sl % 8)
            s.ds(f'ds_read_b64_tr_b16 {vr(WR+r,2)}, v{vWr} offset:{2048*sl}')
            s.ds(f'ds_read_b64_tr_b16 {vr(WR+r+2,2)}, v{vWr} offset:{2048*sl+512}')
            s.ds(f'ds_read_b128 {vr(OR_+r,4)}, v{vOr} offset:{1024*sl}', f'f{sl}')
        if c == 1:
            for r in range(16): s(f'v_mul_f32 v{aY+r}, v{aY+r}, v{vG}')
        for k in range(4):
            sl = 4 * c + k; r = 4 * (sl % 8)
            s.wait(dtag=f'f{sl}')
            s(mfma(vr(aB,16), vr(WR+r,4), vr(OR_+r,4), vr(aB,16) if sl else '0'))
    s.stamp('gemm')
    for Q in range(2):
        for r in range(8 * Q, 8 * Q + 8): s(f'v_fma_f32 v{aB+r}, v{aB+r}, v9, v{aY+r}')
        for j in range(4 * Q, 4 * Q + 4): s(f'v_cvt_pk_bf16_f32 v{TW+j}, v{aB+2*j}, v{aB+2*j+1}')
        s(f'v_permlane32_swap_b32 v{TW+4*Q}, v{TW+4*Q+2}\nv_permlane32_swap_b32 v{TW+4*Q+1}, v{TW+4*Q+3}')
        s.vm(f'buffer_store_dwordx4 {vr(TW+4*Q,4)}, v{vOut}, {sr(SOUT,4)}, s60 offen offset:{32*Q}')
    s.stamp('end')
    if s.stamp_on:
        s('s_waitcnt vmcnt(0)')
        s.stamp('drain')
        s(f's_lshl_b32 s58, s2, 2\ns_add_u32 s58, s58, s{sW}\ns_add_u32 s58, s58, 1024')
        stamp_store(s, SWS, 58, 4)
        if cfg.get('dbgst') is not None:
            s(f'''s_waitcnt vmcnt(0)
s_cmp_lg_u32 s58, {1024 + 4*cfg['dbgst']}
s_cbranch_scc1 K2_END
s_load_dwordx2 s[24:25], s[0:1], 88
s_mov_b32 s26, 256
s_mov_b32 s27, 0x20000
s_mov_b64 exec, 0xffff
v_lshlrev_b32 v4, 2, v{vL}
v_add_u32 v5, {WS_ST + 512*cfg['dbgst']}, v4
v_mov_b32 v8, {WS_ST + 512*cfg['dbgst']}
buffer_load_dword v6, v5, {sr(SWS,4)}, 0 offen offset:4 sc1
buffer_load_dword v7, v8, {sr(SWS,4)}, 0 offen sc1
s_waitcnt vmcnt(0) lgkmcnt(0)
v_writelane_b32 v6, s68, 14
v_writelane_b32 v6, s{68+2*(len(s.stamps)-1)}, 15
v_sub_u32 v6, v6, v7
buffer_store_dword v6, v4, s[24:27], 0 offen
''')
            if cfg.get('spin'):
                s(f'''v_readfirstlane_b32 s60, v7
s_mov_b32 s61, 100000
K2_SPIN:
s_memrealtime s[62:63]
s_sub_u32 s61, s61, 1
s_cmp_eq_u32 s61, 0
s_cbranch_scc1 K2_END
s_waitcnt lgkmcnt(0)
s_sub_u32 s62, s62, s60
s_cmp_lt_u32 s62, {cfg['spin']}
s_cbranch_scc1 K2_SPIN''')
    s('K2_END:\ns_endpgm')
    return s
```

```python
import sys, json, struct
sys.path.insert(0, 'work')
from gen_lib import *
BASE = 'gated_mix__spectral_fnet__linear_kernel_hedgehog__prompt'
KN = BASE + '_kernel'
WS_O, WS_U, WS_P, WS_G, WS_ST = 0, 0x200000, 0x400000, 0x1C0000, 0x600000
WS_N = 0x700000
WS_F = 0x500000
sTAG = 36
LOG2E = 0x3fb8aa3b
def f2h(x): return '0x%08x' % struct.unpack('<I', struct.pack('<f', x))[0]
def vr(b, n): return 'v[%d:%d]' % (b, b + n - 1)
def sr(b, n): return 's[%d:%d]' % (b, b + n - 1)
def mf32(d, a, b, c): return 'v_mfma_f32_32x32x16_bf16 %s, %s, %s, %s' % (d, a, b, c)
def mf16(d, a, b, c): return 'v_mfma_f32_16x16x32_bf16 %s, %s, %s, %s' % (d, a, b, c)

sW, sRB, sH, sHQ, sBETA, sG, sCL, sJ, sRHO = 3, 4, 5, 6, 7, 8, 9, 10, 11
SX, SWQ, SPHI, SWO, SGW, SWS, SDBG, SOUT = 12, 16, 20, 24, 28, 32, 36, 40
sCX, sCW = 44, 51
sGA = 44
sXM, sWM = 58, 59
T0 = 60
sC, sNC = 68, 69
STB = 70
L_WK, L_DF, L_PHI, L_SP = 81920, 110592, 139264, 143360
L_PH, L_V, L_WV2, L_WQ, L_WO = 0, 16384, 32768, 49152, 81920
L_UX, L_GX, L_KX = 81920, 77824, 152064
L_UT, L_RX = 32768, 0
vL, v16 = 1, 3
vWs, vX, vPhi = 10, 11, 13
vXr, vWr, vWr2, vPr = 16, 20, 21, 22
RING, XF = 32, 128

def stamp_store(s):
    if not s.stamp_on: return
    s('s_mov_b64 exec, -1\ns_waitcnt vmcnt(0)')
    s.stamp('drain')
    s('s_waitcnt lgkmcnt(0)')
    s(f's_lshl_b32 s60, s2, 3\ns_add_u32 s60, s60, s{sW}\ns_lshl_b32 s60, s60, 7\ns_add_u32 s60, s60, {WS_ST}\nv_mov_b32 v4, s60\ns_mov_b64 exec, 1')
    s(f'v_mov_b32 v5, s100\nbuffer_store_dword v5, v4, {sr(SWS,4)}, 0 offen offset:64')
    s(f'v_mov_b32 v5, s67\nbuffer_store_dword v5, v4, {sr(SWS,4)}, 0 offen offset:68')
    s(f'v_mov_b32 v5, s101\nbuffer_store_dword v5, v4, {sr(SWS,4)}, 0 offen offset:72')
    for i in range(len(s.stamps)):
        s(f'v_mov_b32 v5, s{s.stamp_base+2*i}\nbuffer_store_dword v5, v4, {sr(SWS,4)}, 0 offen offset:{4*i}')

def softmax_items(P, EM, PH, T):
    it = []
    mx, mn = T, T + 1
    it.append(f'v_cndmask_b32 v{P+12}, v{P+12}, v{P+14}, vcc')
    it.append(f'v_cndmask_b32 v{P+13}, v{P+13}, v{P+15}, vcc')
    it.append(f'v_max3_f32 v{mx}, v{P}, v{P+1}, v{P+2}')
    it.append(f'v_max3_f32 v{mn}, -v{P}, -v{P+1}, -v{P+2}')
    for k in range(3, 13, 2):
        it.append(f'v_max3_f32 v{mx}, v{mx}, v{P+k}, v{P+k+1}')
        it.append(f'v_max3_f32 v{mn}, v{mn}, -v{P+k}, -v{P+k+1}')
    it.append(f'v_max_f32 v{mx}, v{mx}, v{P+13}')
    it.append(f'v_max_f32 v{mn}, v{mn}, -v{P+13}')
    it.append(f'v_permlane32_swap_b32 v{mx}, v{mn}')
    it.append(f'v_max_f32 v{mx}, v{mx}, v{mn}')
    it.append(f'v_mul_f32 v{mx}, s{sNC}, v{mx}')
    it.append(f'v_mov_b32 v{mn}, v{mx}')
    it.append(f'v_permlane32_swap_b32 v{mx}, v{mn}')
    sp = [T + 2, T + 3]; sm = [T + 4, T + 5]
    for r in range(14):
        it.append(f'v_fma_f32 v{EM+r}, v{P+r}, s{sNC}, v{mn}')
        it.append(f'v_fma_f32 v{P+r}, v{P+r}, s{sC}, v{mx}')
        it.append(f'v_exp_f32 v{EM+r}, v{EM+r}')
        it.append(f'v_exp_f32 v{P+r}, v{P+r}')
        q = r - 1
        if q == 2:
            it.append(f'v_add_f32 v{sm[0]}, v{EM}, v{EM+2}'); it.append(f'v_add_f32 v{sp[0]}, v{P}, v{P+2}')
        elif q == 3:
            it.append(f'v_add_f32 v{sm[1]}, v{EM+1}, v{EM+3}'); it.append(f'v_add_f32 v{sp[1]}, v{P+1}, v{P+3}')
        elif q > 3:
            it.append(f'v_add_f32 v{sm[q&1]}, v{sm[q&1]}, v{EM+q}'); it.append(f'v_add_f32 v{sp[q&1]}, v{sp[q&1]}, v{P+q}')
    it.append(f'v_add_f32 v{sm[0]}, v{sm[0]}, v{sm[1]}'); it.append(f'v_add_f32 v{sp[0]}, v{sp[0]}, v{sp[1]}')
    it.append(f'v_add_f32 v{sm[0]}, v{sm[0]}, v{EM+13}'); it.append(f'v_add_f32 v{sp[0]}, v{sp[0]}, v{P+13}')
    it.append(f'v_permlane32_swap_b32 v{sp[0]}, v{sm[0]}')
    it.append(f'v_add_f32 v{sp[0]}, v{sp[0]}, v{sm[0]}')
    it.append(f'v_rcp_f32 v{sp[0]}, v{sp[0]}')
    it.append(f'v_mov_b32 v{sm[0]}, v{sp[0]}')
    it.append(f'v_permlane32_swap_b32 v{sp[0]}, v{sm[0]}')
    for j in range(7):
        it.append(f'v_mul_f32 v{P+2*j}, v{P+2*j}, v{sp[0]}'); it.append(f'v_mul_f32 v{P+2*j+1}, v{P+2*j+1}, v{sp[0]}')
        it.append(f'v_cvt_pk_bf16_f32 v{PH+j}, v{P+2*j}, v{P+2*j+1}')
    for j in range(7):
        it.append(f'v_mul_f32 v{EM+2*j}, v{EM+2*j}, v{sm[0]}'); it.append(f'v_mul_f32 v{EM+2*j+1}, v{EM+2*j+1}, v{sm[0]}')
        it.append(f'v_cvt_pk_bf16_f32 v{PH+7+j}, v{EM+2*j}, v{EM+2*j+1}')
    return it

def xdma(i, both=0):
    sl = i % 5
    it = [f's_add_u32 m0, s{sXM}, {16384*sl}',
          ('vm', f'buffer_load_dwordx4 v{vX}, {sr(SX,4)}, s{sCX+i} offen lds'),
          ('vm', f'buffer_load_dwordx4 v{vX+1}, {sr(SX,4)}, s{sCX+i} offen offset:1024 lds', f'x{i}')]
    if both:
        it += [f's_add_u32 m0, s{sXM}, {16384*sl+2048*both}',
               ('vm', f'buffer_load_dwordx4 v28, {sr(SX,4)}, s{sCX+i} offen lds'),
               ('vm', f'buffer_load_dwordx4 v29, {sr(SX,4)}, s{sCX+i} offen offset:1024 lds', f'x{i}')]
    return it
def wdst(kind, i):
    if kind == 'k': return L_WK + 4096 * i
    if kind == 'v': return L_SP + 4096 * i if i < 5 else L_WV2 + 4096 * (i - 5)
    return L_WQ + 4096 * i
def wdma(kind, i, vsrc):
    return [f's_add_u32 m0, s{sWM}, {wdst(kind, i)}',
            ('vm', f'buffer_load_dwordx4 v{vsrc}, {sr(SWQ,4)}, s{sCW+i} offen lds', f'w{kind}{i}')]

DEF_PLAN = {
    'A': {'pre0': ['k0', 'x0', 'k1', 'x1'], 'pre1': ['phi', 'k2', 'x2'], 'b0': ['k3', 'x3', 'clr']},
    'B': {'pre0': ['x0', 'gate', 'x1'], 'pre1': ['x2'], 'b0': ['x3', 'k4', 'X4'], 'b1': ['k5', 'X5'], 'b2': ['k6', 'X6'], 'b3': ['v0', 'v1', 'v2', 'v3'],
          'b4': ['v4', 'v5', 'v6'], 'b5': ['q0', 'q1', 'q2'], 'b6': ['q3', 'q4', 'q5', 'q6'], 'v2': ['dbg'], 'kv': ['o0', 'o1', 'o2', 'o3']},
}

def chunk_sgprs(s, lo, hi):
    for i in range(lo, hi):
        if i: s('s_add_u32 s62, s62, 1\ns_cmp_eq_u32 s62, 7\ns_cselect_b32 s62, 0, s62')
        s(f's_lshl_b32 s{sCX+i}, s62, 7\ns_mul_i32 s{sCW+i}, s62, {64*2688}')

def prologue(s):
    s('s_cmp_ge_u32 s2, 256\ns_cbranch_scc1 K_END')
    s.stamp('start')
    s(f'''s_load_dwordx2 {sr(SWQ,2)}, s[0:1], 48
s_load_dwordx2 {sr(SX,2)}, s[0:1], 0
s_load_dwordx2 {sr(SPHI,2)}, s[0:1], 56
s_load_dwordx2 {sr(SGW,2)}, s[0:1], 72
s_load_dwordx2 {sr(SWS,2)}, s[0:1], 96
s_load_dwordx2 {sr(SWO,2)}, s[0:1], 64
s_load_dwordx2 {sr(SOUT,2)}, s[0:1], 80
v_lshrrev_b32 v4, 6, v0
v_and_b32 v{vL}, 63, v0
s_and_b32 s60, s2, 7
v_readfirstlane_b32 s{sW}, v4
s_lshr_b32 s61, s2, 3
s_and_b32 s62, s61, 3
s_lshr_b32 s{sJ}, s61, 2
s_lshl_b32 s{sCL}, s60, 2
s_add_u32 s{sCL}, s{sCL}, s62
s_and_b32 s{sRB}, s{sCL}, 15
s_lshr_b32 s{sH}, s60, 2
s_lshl_b32 s{sH}, s{sH}, 3
s_add_u32 s{sH}, s{sH}, s{sJ}
s_and_b32 s{sG}, s{sW}, 3
s_lshl_b32 s{sBETA}, s{sRB}, 2
s_add_u32 s{sBETA}, s{sBETA}, s{sG}
s_lshl_b32 s62, s{sRB}, 1
s_add_u32 s62, s62, s{sH}
s_mul_i32 s63, s62, 37
s_lshr_b32 s63, s63, 8
s_mul_i32 s63, s63, 7
s_sub_u32 s{sRHO}, s62, s63
s_mov_b32 s62, s{sRHO}''')
    chunk_sgprs(s, 0, 2)
    for r, n in ((SX, 2048*896), (SWQ, 448*2688)):
        s(f's_mov_b32 s{r+2}, {n}\ns_mov_b32 s{r+3}, 0x20000')
    s(f'''v_lshrrev_b32 v6, 3, v{vL}
v_and_b32 v7, 7, v{vL}
v_lshrrev_b32 v8, 4, v{vL}
v_xor_b32 v7, v7, v8
v_lshlrev_b32 v7, 4, v7
s_mov_b32 s63, 57344
v_mad_u32_u24 v{vX}, v6, s63, v7
s_lshr_b32 s64, s{sW}, 2
s_lshl_b32 s{sXM}, s{sG}, 12
s_lshl_b32 s60, s64, 11
s_add_u32 s{sXM}, s{sXM}, s60
s_mul_i32 s60, s{sBETA}, 896
s_mul_i32 s61, s64, {2*458752}
s_add_u32 s60, s60, s61
v_add_u32 v{vX}, s60, v{vX}
v_xor_b32 v{vX+1}, 64, v{vX}
v_add_u32 v{vX+1}, {458752-1024}, v{vX+1}
s_cmp_ge_u32 s{sW}, 4
s_cbranch_scc1 B_START''')

def wsrc_setup(s):
    s(f'''v_lshrrev_b32 v4, 2, v{vL}
v_and_b32 v5, 3, v{vL}
v_lshlrev_b32 v5, 4, v5
v_min_u32 v5, 40, v5
s_movk_i32 s63, 2688
v_mad_u32_u24 v{vWs}, v4, s63, v5
s_mul_i32 s60, s{sG}, 43008
s_mul_i32 s61, s{sH}, 56
s_add_u32 s60, s60, s61
s_add_u32 s60, s60, 896
v_add_u32 v{vWs}, s60, v{vWs}
s_lshl_b32 s{sWM}, s{sG}, 10''')

def prologue2(s):
    chunk_sgprs(s, 2, 7)
    for r, n in ((SPHI, 25088), (SWO, 401408), (SWS, WS_N), (SOUT, 2048*896)):
        s(f's_mov_b32 s{r+2}, {n}\ns_mov_b32 s{r+3}, 0x20000')
    s(f'''s_xor_b32 s{sHQ}, s{sH}, 1
v_lshlrev_b32 v{v16}, 4, v{vL}
v_and_b32 v6, 31, v{vL}
v_lshrrev_b32 v7, 5, v{vL}
v_bfe_u32 v8, v{vL}, 1, 3
v_xor_b32 v8, v8, v7
v_lshlrev_b32 v8, 4, v8
v_lshl_add_u32 v{vXr}, v6, 7, v8
s_lshl_b32 s60, s{sG}, 12
v_add_u32 v{vXr}, s60, v{vXr}
v_xor_b32 v{vXr+1}, 32, v{vXr}
v_xor_b32 v{vXr+2}, 64, v{vXr}
v_xor_b32 v{vXr+3}, 0x60, v{vXr}
v_bfe_u32 v8, v{vL}, 4, 1
v_and_b32 v9, 3, v{vL}
v_lshl_add_u32 v8, v8, 2, v9
v_cmp_lt_u32 vcc, 5, v8
v_cndmask_b32 v8, v8, 7, vcc
v_lshlrev_b32 v8, 3, v8
v_bfe_u32 v9, v{vL}, 2, 2
v_lshl_add_u32 v8, v9, 6, v8
v_lshl_add_u32 v{vWr}, v7, 9, v8
s_mov_b32 s{sC}, {LOG2E}
s_mov_b32 s{sNC}, {LOG2E | 0x80000000}''')

def prefetch(s, role):
    if role == 'A':
        s(f'''s_lshr_b32 s61, s2, 3
v_lshrrev_b32 v30, 4, v{vL}
s_lshl_b32 s60, s{sJ}, 2
v_add_u32 v30, s60, v30
v_lshlrev_b32 v30, 6, v30
v_bfe_u32 v31, v{vL}, 2, 2
v_add_u32 v30, v30, v31
s_lshl_b32 s60, s{sRB}, 2
v_add_u32 v30, s60, v30
s_movk_i32 s60, 896
v_mul_u32_u24 v30, s60, v30
v_and_b32 v31, 3, v{vL}
v_lshl_add_u32 v30, v31, 7, v30
s_and_b32 s60, s{sW}, 1
s_lshl_b32 s60, s60, 9
s_mul_i32 s61, s61, 12544
s_lshl_b32 s63, s60, 4
s_add_u32 s61, s61, s63
v_lshlrev_b32 v31, 7, v{vL}
s_cmp_ge_u32 s{sW}, 2
s_cbranch_scc1 PFA_O
buffer_load_dword v96, v30, {sr(SX,4)}, s60 offen
s_branch PFA_E
PFA_O:
buffer_load_dword v96, v31, {sr(SWO,4)}, s61 offen
PFA_E:''')
    else:
        s(f'''s_lshr_b32 s61, s2, 3
s_mul_i32 s61, s61, {14*2688}
s_lshr_b32 s60, s{sH}, 3
s_mul_i32 s60, s60, 384
s_add_u32 s61, s61, s60
s_mul_i32 s60, s{sG}, 896
s_add_u32 s61, s61, s60
v_lshrrev_b32 v30, 2, v{vL}
s_movk_i32 s60, 2688
v_mul_u32_u24 v30, s60, v30
v_and_b32 v31, 3, v{vL}
v_lshl_add_u32 v30, v31, 7, v30
buffer_load_dword v250, v30, {sr(SWQ,4)}, s61 offen''')
    s.nvm += 1; s.vt['pf'] = s.nvm

def uaddr(va, s0, s1, sm):
    return f'''v_and_b32 v9, 15, v{vL}
s_mul_i32 s{s0}, s{sH}, 14
v_add_u32 v{va}, s{s0}, v9
v_cmp_eq_u32 vcc, 15, v9
v_mov_b32 v9, 224
v_cndmask_b32 v{va}, v{va}, v9, vcc
v_lshlrev_b32 v{va}, 4, v{va}
v_bfe_u32 v9, v{vL}, 4, 1
v_lshl_add_u32 v{va}, v9, 20, v{va}
v_lshl_add_u32 v{va}, v7, 17, v{va}
s_lshl_b32 s{s0}, s{sG}, 18
s_lshl_b32 s{s1}, s{sRB}, 12
s_add_u32 s{s0}, s{s0}, s{s1}
s_add_u32 s{s0}, s{s0}, {WS_U}
s_add_u32 s{s1}, s{s0}, 65536
s_cmp_eq_u32 s{sH}, 0
s_cselect_b32 s{sm}, 0x80008000, 0
s_or_b32 s{sm}, s{sm}, 0x3fff3fff
s_mov_b32 s{sm+1}, s{sm}'''.split('\n')

def xreads(i):
    sl = i % 5
    return [('ds', f'ds_read_b128 {vr(XF+16*i+4*k,4)}, v{vXr+k} offset:{16384*sl}' if sl < 4 else f'ds_read_b128 {vr(XF+16*i+4*k,4)}, v{24+k}', f'xf{4*i+k}')
            for k in range(4)]

def chunk_loop(s, cfg, rd, fk, mf, items, pre, post):
    for i in range(7):
        t = [x for x in pre(i) if x in s.vt]
        lazy = cfg.get('lazy', 0)
        dt = ('all' if i else None) if not lazy else (f'dfw{i}' if f'dfw{i}' in s.dt else None)
        s.wait(vtag=max(t, key=lambda x: s.vt[x]) if t else None, dtag=dt)
        s.stamp(f'W{i}')
        s.run(items(f'w{i}'))
        s('s_barrier')
        s.stamp(f'B{i}')
        xr = xreads(i)
        reads = [[xr[k]] + rd(4 * i + k) for k in range(4)]
        dm = items(f'b{i}')
        if i == 0: s.run(reads); s.run(post(i)); s.run(dm)
        else:
            mf_ = mf
            if lazy: mf = lambda sl: [('wl', f'{fk}{sl}'), mf_(sl)]
            seq = [[mf(4 * (i - 1))], reads[0], reads[1], [mf(4 * (i - 1) + 1)], reads[2], reads[3], [mf(4 * (i - 1) + 2)], post(i)]
            if cfg.get('il', 0):
                one = []; cur = []
                for d in dm:
                    for x in d:
                        cur.append(x)
                        if isinstance(x, tuple) and x[0] == 'vm': one.append(cur); cur = []
                assert not cur
                po = post(i); n = len(one); m = len(po)
                seq = []
                rs = [reads[0] + reads[1], reads[2] + reads[3], [], []] if cfg['il'] == 1 else reads
                for k in range(4):
                    pf = cfg.get('pofirst', 3)
                    if pf == 3: seq += [[mf(4 * (i - 1) + k)], rs[k], one[k * n // 4:(k + 1) * n // 4], po if k == 3 else []]
                    else: seq += [[mf(4 * (i - 1) + k)], rs[k], po if k == pf else [], one[k * n // 4:(k + 1) * n // 4]]
            elif cfg.get('dma_mid', 1): seq += [dm[:len(dm)//2], [mf(4 * (i - 1) + 3)], dm[len(dm)//2:]]
            else: seq += [[mf(4 * (i - 1) + 3)], dm]
            s.run(seq)
            mf = mf_
    for k in range(4):
        s.wait(dtag=f'{fk}{24+k}')
        s(mf(24 + k))

def wread(kind, sl):
    r = RING + 4 * (sl % 8)
    if kind == 'k': b, o = vWr, 1024 * sl
    elif kind == 'q': b, o = vWr2, 1024 * sl
    else: b, o = (vWr, 1024 * sl) if sl < 20 else (vWr2, 1024 * (sl - 20))
    return [('ds', f'ds_read_b64_tr_b16 {vr(r,2)}, v{b} offset:{o}'), ('ds', f'ds_read_b64_tr_b16 {vr(r+2,2)}, v{b} offset:{o+256}', f'{kind}f{sl}')]

def gemm_groups(kind, lo, hi, acc, pre=4):
    g = []; head = []
    for sl in range(lo, min(lo + pre, hi)): head += wread(kind, sl)
    for sl in range(lo, hi):
        it = []
        if sl == lo: it += head
        it.append(('wl', f'{kind}f{sl}'))
        it.append(mf32(vr(acc,16), vr(RING+4*(sl%8),4), vr(XF+4*sl,4), vr(acc,16) if sl else '0'))
        if sl + pre < hi: it += wread(kind, sl + pre)
        g.append(it)
    return g

def gather(s, nm, n, reg, vaddr, soff, work, tail, cnt=400, width=4, srd=None):
    op = {4: 'buffer_load_dwordx4', 1: 'buffer_load_dword'}[width]
    def rg(p): return vr(reg + 4 * p, 4) if width == 4 else f'v{reg+p}'
    def ld(p): return f'{op} {rg(p)}, v{vaddr}, {sr(SWS,4)}, {soff(p)} sc1'
    def chk(p):
        if width == 4: return [f'v_max_u32 v9, v{reg+4*p}, v{reg+4*p+3}', 'v_cmp_eq_u32 vcc, -1, v9', f's_cbranch_vccnz {nm}_RT{p}']
        return [f'v_cmp_eq_u32 vcc, -1, v{reg+p}', f's_cbranch_vccnz {nm}_RT{p}']
    s(f's_movk_i32 s67, {cnt}')
    extra = s.nvm - s.vt[f'{nm}{n-1}']
    two = extra > 0
    R = 'R' if two else ''
    for p in range(n):
        s(f'{nm}_CK{p}:')
        s.vdone = 0
        s.wait(vtag=f'{nm}{p}')
        s.run(chk(p)); s(f'{nm}_OK{p}:')
        if p == 0: s.stamp(nm + '0')
        w = work(p)
        s.run(w)
        t = [f'{nm}_RT{p}:', 's_sub_u32 s67, s67, 1', 's_cmp_eq_u32 s67, 0', f's_cbranch_scc1 {nm}_GU{p}', 's_waitcnt vmcnt(0)']
        t += [ld(q) for q in range(p, n)]
        t += [f's_branch {nm}_{R}CK{p}', f'{nm}_GU{p}:', 's_movk_i32 s67, 1', 's_waitcnt vmcnt(0)', f's_branch {nm}_{R}OK{p}']
        tail += t
    if two:
        s(f'{nm}_JOIN:')
        for p in range(n):
            w = work(p)
            assert all(isinstance(x, str) for x in w)
            tail += [f'{nm}_RCK{p}:', f's_waitcnt vmcnt({n-1-p})'] + chk(p) + [f'{nm}_ROK{p}:'] + w
        tail.append(f's_branch {nm}_JOIN')

def final_setup(kh):
    T2 = 96
    it = f'''s_lshr_b32 s60, s{sG}, 1
s_lshl_b32 s60, s60, 5
s_add_u32 s60, s60, s{sCL}
s_and_b32 s61, s{sG}, 1
s_lshl_b32 s62, s61, 10
s_add_u32 s63, s62, s60
v_and_b32 v4, 15, v{vL}
v_lshrrev_b32 v5, 4, v{vL}
v_lshl_add_u32 v6, v4, 6, s63
v_cvt_f32_u32 v7, v6
v_mul_f32 v7, {f2h(1/2048)}, v7
v_lshl_add_u32 v8, v5, 2, {32*kh}
v_cvt_f32_u32 v8, v8
v_mul_f32 v8, v8, v7
s_cmp_ge_u32 s{sJ}, 4
s_cselect_b32 s64, 0x80000000, 0
s_cmp_ge_u32 s{sJ}, 3
s_cselect_b32 s65, 0x80000000, 0
s_movk_i32 s66, 896
v_mul_u32_u24 v15, s66, v6
v_and_b32 v6, 1, v5
v_lshl_add_u32 v15, v6, 5, v15
v_lshrrev_b32 v6, 1, v5
v_lshl_add_u32 v15, v6, 4, v15
s_lshl_b32 s66, s{sJ}, 7
s_add_u32 s66, s66, {64*kh}
v_add_u32 v15, s66, v15
s_lshl_b32 s66, s60, 7
s_lshl_b32 s62, s61, 6
s_add_u32 s66, s66, s62
s_add_u32 s66, s66, {WS_G}
v_lshlrev_b32 v29, 2, v4
v_add_u32 v29, s66, v29
s_lshl_b32 s60, s60, 1
s_add_u32 s60, s60, s61
s_mul_i32 s60, s60, 14336
s_add_u32 s60, s60, {WS_O+7168*kh}
v_add_u32 v14, s60, v{v16}
v_lshlrev_b32 v23, 4, v4
v_lshl_add_u32 v23, v5, 10, v23
v_add_u32 v23, {L_UT+8192*kh}, v23'''.split('\n')
    for u in range(2):
        for jj in range(4):
            r = T2 + 4 * u + jj
            it += [f'v_fmamk_f32 v9, v7, {f2h(16*u+jj)}, v8' if (u or jj) else 'v_mov_b32 v9, v8', 'v_cos_f32 v6, v9', 'v_sin_f32 v9, v9',
                   f'v_cvt_pk_bf16_f32 v{r}, v6, v9', f'v_xor_b32 v{r+8}, s65, v{r}', f'v_xor_b32 v{r}, s64, v{r}']
    it += f'''v_bfe_u32 v6, v{vL}, 2, 2
v_and_b32 v7, 1, v5
v_lshl_add_u32 v7, v7, 2, v6
v_bfe_u32 v8, v{vL}, 1, 1
v_xor_b32 v8, v8, v7
v_lshlrev_b32 v8, 4, v8
v_mad_u32_u24 v6, v5, 56, v6
v_lshl_add_u32 v8, v6, 7, v8
v_and_b32 v7, 1, v{vL}
v_lshl_add_u32 v8, v7, 3, v8
v_add_u32 v24, {L_WO + 128*224*kh}, v8
v_xor_b32 v25, 32, v24
v_xor_b32 v26, 64, v24
v_xor_b32 v27, 0x60, v24
s_lshl_b32 s60, s{sW}, 11
v_add_u32 v28, s60, v{v16}
v_xor_b32 v30, 0x2000, v28'''.split('\n')
    return it

WOFF = [(0, 8), (4, 12), (16, 24), (28, 36), (32, 40), (44, 52), (20, 48)]
def wo_reads():
    it = []
    for j in range(7):
        for ct in range(4):
            r = XF + 16 * j + 4 * ct
            for u in range(2):
                o = WOFF[j][u]
                it.append(('ds', f'ds_read_b64_tr_b16 {vr(r+2*u,2)}, v{24 + (ct ^ (2 * ((o >> 2) & 1)))} offset:{128*o}', f'wo{j}_{ct}'))
    return it

OG = 32
def osoff(p): return ['0', 's60'][p >> 2] + ' offen' + (f' offset:{1024*(p&3)}' if p & 3 else '')
def o_issue(s, nm):
    s('s_movk_i32 s60, 4096')
    for p in range(7): s.vm(f'buffer_load_dwordx4 {vr(OG+4*p,4)}, v14, {sr(SWS,4)}, {osoff(p)} sc1', f'{nm}{p}')
def g_issue(s, nm): s.vm(f'buffer_load_dword v31, v29, {sr(SWS,4)}, 0 offen sc1', f'{nm}0')

def final_stage(s, kh, cfg, tail):
    nm = 'OA' if kh == 0 else 'OB'
    UF, T2, ACC = 64, 96, 112
    s.stamp('Bu')
    for u in range(2):
        for ct in range(4):
            s.ds(f'ds_read_b128 {vr(UF+16*u+4*ct,4)}, v23 offset:{4096*u+256*ct}', f'uf{u}{ct}')
    if f'{nm}0' not in s.vt and cfg.get('oiss', 1) == 1: o_issue(s, nm)
    if cfg.get('wo_at', 'Bs') == 'Bu': s.run(wo_reads())
    for u in range(2):
        for ct in range(4):
            s.wait(dtag=f'uf{u}{ct}')
            s(mf16(vr(ACC+4*ct,4), vr(UF+16*u+4*ct,4), vr(T2+8*(ct>>1)+4*u,4), vr(ACC+4*ct,4) if u else '0'))
    if f'{nm}0' not in s.vt: o_issue(s, nm)
    for r in range(16): s(f'v_mul_f32 v{ACC+r}, v{ACC+r}, v31')
    s.wait(dtag='all')
    s.stamp('Y')
    give = (2, 3) if kh == 0 else (0, 1)
    keep = (0, 1) if kh == 0 else (2, 3)
    def work(p):
        return [mf16(vr(ACC+4*ct,4), vr(XF+16*p+4*ct,4), vr(OG+4*p,4), vr(ACC+4*ct,4)) for ct in give + keep]
    gather(s, nm, 7, OG, 14, osoff, work, tail)
    s.stamp('og')
    for k, ct in enumerate(give): s.ds(f'ds_write_b128 v28, {vr(ACC+4*ct,4)} offset:{L_RX+1024*k}')
    s.wait(dtag='all'); s('s_barrier')
    for k in range(2): s.ds(f'ds_read_b128 {vr(UF+4*k,4)}, v30 offset:{L_RX+1024*k}', f'rx{k}')
    for k, ct in enumerate(keep):
        s.wait(dtag=f'rx{k}')
        for r in range(4): s(f'v_add_f32 v{ACC+4*ct+r}, v{ACC+4*ct+r}, v{UF+4*k+r}')
        s(f'v_cvt_pk_bf16_f32 v{OG+2*k}, v{ACC+4*ct}, v{ACC+4*ct+1}\nv_cvt_pk_bf16_f32 v{OG+2*k+1}, v{ACC+4*ct+2}, v{ACC+4*ct+3}')
    s(f'v_permlane16_swap_b32 v{OG}, v{OG+2}\nv_permlane16_swap_b32 v{OG+1}, v{OG+3}')
    s.vm(f'buffer_store_dwordx4 {vr(OG,4)}, v15, {sr(SOUT,4)}, 0 offen')
    s.stamp('end')

def wosrc(vWo):
    return f'''v_lshrrev_b32 v4, 3, v{vL}
v_and_b32 v5, 7, v{vL}
v_xor_b32 v5, v5, v4
v_lshlrev_b32 v5, 4, v5
s_movk_i32 s60, 896
v_mad_u32_u24 v{vWo}, v4, s60, v5
v_add_u32 v{vWo+1}, 6144, v{vWo}
v_add_u32 v{vWo+2}, 12288, v{vWo}
v_add_u32 v{vWo+3}, 18432, v{vWo}
s_mul_i32 s38, s{sG}, {112*896}
s_lshl_b32 s60, s{sJ}, 7
s_add_u32 s38, s38, s60
s_mul_i32 s39, s{sG}, {112*128}
s_add_u32 s39, s39, {L_WO}'''.split('\n')
def wodma(k, vWo):
    it = [f's_add_u32 m0, s39, {4096*k}', f's_add_u32 s61, s38, {4*7168*k}']
    for u in range(4 if k < 3 else 2):
        if 7 <= 4 * k + u < 11: it.append(f'v_xor_b32 v{vWo+u}, 64, v{vWo+u}')
        it.append(('vm', f'buffer_load_dwordx4 v{vWo+u}, {sr(SWO,4)}, s61 offen offset:{1024*u} lds', f'wo{k}'))
    return it

def lastw(s, tags):
    t = [x for x in tags if x in s.vt]
    if t: s.wait(vtag=max(t, key=lambda x: s.vt[x]))

def gen_A(s, cfg, plan):
    ACC, P, EM, PH, WF, T = 64, 80, 96, 112, 248, 24
    KB = EM
    vPW, vPR, vVR, vPS, vOS = 240, 244, 245, 247, 2
    vWv = 15
    tail = []
    clrb = cfg.get('clrb', 'v1')
    def items(pt):
        out = []
        for it in plan.get(pt, []):
            if it[0] == 'x': out.append(xdma(int(it[1])))
            elif it[0] == 'X':
                d = xdma(int(it[1]), 1); out.append(d[:3]); out.append(d[3:])
            elif it[0] == 'k': out.append(wdma('k', int(it[1]), vWs))
            elif it[0] == 'v': out.append(wdma('v', int(it[1]), vWv))
            elif it[0] == 'q': out.append(wdma('q', int(it[1]), 14))
            elif it == 'phi':
                out.append([f's_add_u32 m0, s{sWM}, {L_PHI}', ('vm', f'buffer_load_dwordx4 v{vPhi}, {sr(SPHI,4)}, 0 offen lds', 'phi')])
            elif it == 'pf': out.append([('fn', lambda: prefetch(s, 'A'))])
            elif it == 'clr':
                if cfg.get('noclr'): continue
                out.append([('vm', f'buffer_store_dwordx4 {vr(P,4)}, v{vPS}, {sr(SWS,4)}, 0 offen sc1', 'clr')])
                for u in range(4):
                    out.append([('vm', f'buffer_store_dwordx4 {vr(P,4)}, v{v16}, {sr(SWS,4)}, s65 offen offset:{1024*u} sc1', 'clr')])
            elif it == 'cP':
                out.append([('vm', f'buffer_store_dwordx4 {vr(P,4)}, v{v16}, {sr(SWS,4)}, s64 offen sc1', 'clr')])
            elif it == 'cO0': out.append([('vm', f'buffer_store_dwordx4 {vr(P,4)}, v{vOS}, {sr(SWS,4)}, 0 offen sc1', 'clr')])
            elif it == 'cO1':
                out.append(['s_mov_b32 exec_hi, 0', ('vm', f'buffer_store_dwordx4 {vr(P,4)}, v{vOS}, {sr(SWS,4)}, 0 offen offset:2048 sc1', 'clr'), 's_mov_b32 exec_hi, -1'])
            elif it == 'cO2':
                out.append([f's_and_b32 s60, s{sHQ}, 1', 's_mul_i32 s60, s60, -3064', f's_add_u32 s60, s60, {6144-1024}', 's_mov_b32 exec_lo, 0',
                            ('vm', f'buffer_store_dwordx2 {vr(P,2)}, v{vOS}, {sr(SWS,4)}, s60 offen sc1', 'clr'), 's_mov_b32 exec_lo, -1'])
            elif it == 'cG':
                out.append([f's_lshl_b32 s60, s{sBETA}, 7', f's_add_u32 s60, s60, {WS_G}', f's_cmp_eq_u32 s{sH}, 0', 's_cselect_b32 s61, 0xff, 0',
                            's_mov_b32 exec_hi, 0', 's_mov_b32 exec_lo, s61',
                            ('vm', f'buffer_store_dwordx4 {vr(P,4)}, v{v16}, {sr(SWS,4)}, s60 offen sc1', 'clr'), 's_mov_b64 exec, -1'])
            elif it[0] == 'c':
                out.append([('vm', f'buffer_store_dwordx4 {vr(P,4)}, v{v16}, {sr(SWS,4)}, s65 offen offset:{1024*int(it[1])} sc1', 'clr')])
            elif it == 'osrc': out.append(wosrc(64))
            elif it[0] == 'o': out.append(wodma(int(it[1]), 64))
            elif it == 'tlb':
                out.append([f's_load_dword s66, {sr(SWS,2)}, 0', f's_mov_b32 s60, {WS_U}', f's_load_dword s66, {sr(SWS,2)}, s60',
                            f's_mov_b32 s60, {WS_P}', f's_load_dword s66, {sr(SWS,2)}, s60', f's_load_dword s66, {sr(SOUT,2)}, 0'])
            else: raise ValueError(it)
        return out
    def do(pt): s.run(items(pt))
    def flag(): return []
    s(f's_setprio {cfg.get("prioA", 2)}')
    wsrc_setup(s)
    s(f'v_add_u32 v28, {2*458752}, v{vX}\nv_add_u32 v29, {2*458752}, v{vX+1}')
    s(f'''v_lshlrev_b32 v{v16}, 4, v{vL}
v_mov_b32 v{P}, -1
v_mov_b32 v{P+1}, -1
v_mov_b32 v{P+2}, -1
v_mov_b32 v{P+3}, -1
s_lshl_b32 s65, s2, 2
s_add_u32 s65, s65, s{sG}
s_lshl_b32 s65, s65, 12
s_lshl_b32 s64, s{sH}, 2
s_add_u32 s64, s64, s{sG}
s_lshl_b32 s64, s64, 4
s_add_u32 s64, s64, s{sRB}
s_lshl_b32 s64, s64, 10
s_add_u32 s64, s64, {WS_P}
s_mov_b32 s{SWS+2}, {WS_N}
s_mov_b32 s{SWS+3}, 0x20000''')
    s('s_waitcnt lgkmcnt(0)')
    s.stamp('karg')
    do('pre0')
    prologue2(s)
    s(f'''s_and_b32 s60, s{sG}, 1
s_lshl_b32 s60, s60, 4
v_add_u32 v9, s60, v4
s_cmp_lt_u32 s{sG}, 2
s_cselect_b32 s61, s{sH}, s{sHQ}
s_mul_i32 s61, s61, 1568
v_mad_u32_u24 v{vPhi}, v9, 56, v5
v_add_u32 v{vPhi}, s61, v{vPhi}
v_cmp_lt_u32 vcc, 27, v9
v_bfrev_b32 v9, 1
v_cndmask_b32 v{vPhi}, v{vPhi}, v9, vcc''')
    do('pre1')
    s(f'''v_lshl_add_u32 v{vPr}, v7, 8, v8
v_add_u32 v{vPr}, {L_PHI}, v{vPr}
v_add_u32 v{vWr2}, {L_WQ}, v{vWr}
v_add_u32 v{vWr}, {L_WK}, v{vWr}
v_add_u32 v{vWv}, 896, v{vWs}
s_sub_u32 s60, s{sHQ}, s{sH}
s_mul_i32 s60, s60, 56
s_sub_u32 s60, s60, 896
v_add_u32 v14, s60, v{vWs}
v_add_u32 v{vPS}, s64, v{v16}
v_mov_b32 v{PH+14}, 0
v_mov_b32 v{PH+15}, 0''')
    s(f'''v_and_b32 v9, 15, v{vL}
v_lshlrev_b32 v9, 4, v9
v_lshl_add_u32 v9, v7, 10, v9
v_lshrrev_b32 v4, 4, v6
s_movk_i32 s60, 14336
v_mad_u32_u24 v9, v4, s60, v9
s_mul_i32 s60, s{sBETA}, 28672
s_lshr_b32 s61, s{sHQ}, 3
s_mul_i32 s61, s61, 7168
s_add_u32 s60, s60, s61
s_bfe_u32 s61, s{sHQ}, 0x20001
s_lshl_b32 s61, s61, 8
s_add_u32 s60, s60, s61
s_and_b32 s61, s{sHQ}, 1
s_mul_i32 s61, s61, 3072
s_add_u32 s60, s60, s61
v_add_u32 v{vOS}, s60, v9
v_and_b32 v4, 7, v{vL}
v_xor_b32 v4, v4, v7
v_lshlrev_b32 v4, 4, v4
v_lshl_add_u32 v4, v6, 7, v4
s_lshl_b32 s60, s{sG}, 12
v_add_u32 v{vPW}, s60, v4
v_xor_b32 v{vPW+1}, 32, v{vPW}
v_xor_b32 v{vPW+2}, 64, v{vPW}
v_xor_b32 v{vPW+3}, 0x60, v{vPW}
v_lshrrev_b32 v4, 2, v{vL}
v_and_b32 v5, 7, v4
v_bfe_u32 v9, v{vL}, 1, 1
s_lshl_b32 s60, s{sG}, 1
v_or_b32 v9, s60, v9
v_xor_b32 v9, v9, v5
v_lshlrev_b32 v9, 4, v9
v_lshl_add_u32 v9, v4, 7, v9
v_and_b32 v8, 1, v{vL}
v_lshl_add_u32 v{vPR}, v8, 3, v9
v_lshrrev_b32 v5, 1, v5
v_xor_b32 v5, v5, v8
v_lshlrev_b32 v5, 4, v5
v_lshl_add_u32 v5, v4, 6, v5
v_bfe_u32 v9, v{vL}, 1, 1
v_lshl_add_u32 v5, v9, 3, v5
v_add_u32 v{vVR}, {L_V}, v5
v_xor_b32 v{vVR+1}, 32, v{vVR}''')
    for k in range(4): s(f'v_add_u32 v{24+k}, 0x10000, v{vXr+k}')
    do('pre2')
    phib = cfg.get('phib', 2)
    def pre(i): return [f'x{i}', f'wk{i}'] + (['phi'] if i == phib else []) + (['clr'] if i == clrb else []) + (['pf'] if i == 6 else [])
    def post(i):
        it = []
        if i == phib: it += [('ds', f'ds_read_b64_tr_b16 {vr(WF+2*j,2)}, v{vPr} offset:{512*j}', 'phik') for j in range(4)]
        if i == clrb: it += flag()
        return it
    chunk_loop(s, cfg, lambda sl: wread('k', sl), 'kf', lambda sl: mf32(vr(ACC,16), vr(RING+4*(sl%8),4), vr(XF+4*sl,4), vr(ACC,16) if sl else '0'),
               items, pre, post)
    s.stamp('kdone')
    do('kd')
    s('s_mov_b32 vcc_lo, 0\ns_mov_b32 vcc_hi, -1')
    for j in range(8): s(f'v_cvt_pk_bf16_f32 v{KB+j}, v{ACC+2*j}, v{ACC+2*j+1}')
    s(mf32(vr(P,16), vr(WF,4), vr(KB,4), '0'))
    s(mf32(vr(P,16), vr(WF+4,4), vr(KB+4,4), vr(P,16)))
    do('pk')
    nv1 = cfg.get('nv1', 7)
    for n, it in enumerate(softmax_items(P, EM, PH, T)):
        if n == cfg.get('bv1_at', 0):
            lastw(s, [f'wv{i}' for i in range(nv1)] + (['clr'] if clrb == 'v1' else [])); s('s_barrier')
            s.stamp('Bv1')
            if clrb == 'v1': s.run(flag())
        if nv1 < 7 and n == cfg.get('bv2_at', 90):
            lastw(s, [f'wv{i}' for i in range(7)]); s('s_barrier')
            s.stamp('Bv2')
        s(it)
        for ks in range(4):
            last = min(4 * ks + 3, 13)
            if it.startswith(f'v_cvt_pk_bf16_f32 v{PH+last},'):
                assert n > cfg.get('bv1_at', 0)
                s.ds(f'ds_write_b128 v{vPW+ks}, {vr(PH+4*ks,4)}')
    s.stamp('smk')
    bp = cfg.get('bp', 0)
    if not bp: lastw(s, [f'wq{i}' for i in range(7)])
    s.wait(dtag='all'); s('s_barrier')
    s.stamp('Bkv')
    AF, BF, KV = RING, RING + 16, P
    for gp in range(4):
        s.ds(f'ds_read_b64_tr_b16 {vr(AF+4*gp,2)}, v{vPR} offset:{4096*gp}')
        s.ds(f'ds_read_b64_tr_b16 {vr(AF+4*gp+2,2)}, v{vPR} offset:{4096*gp+2048}')
        for t in range(2):
            s.ds(f'ds_read_b64_tr_b16 {vr(BF+8*gp+4*t,2)}, v{vVR+t} offset:{2048*gp}')
            s.ds(f'ds_read_b64_tr_b16 {vr(BF+8*gp+4*t+2,2)}, v{vVR+t} offset:{2048*gp+1024}', f'kv{gp}{t}')
    for gp in range(4):
        for t in range(2):
            s.wait(dtag=f'kv{gp}{t}')
            s(mf16(vr(KV+4*t,4), vr(AF+4*gp,4), vr(BF+8*gp+4*t,4), vr(KV+4*t,4) if gp else '0'))
    qg = gemm_groups('q', 0, 28, ACC)
    if not bp:
        head = qg[0][:8]; qg[0] = qg[0][8:]
        s.run(head)
    for j in range(4): s(f'v_cvt_pk_bf16_f32 v{KV+8+j}, v{KV+2*j}, v{KV+2*j+1}')
    s(f'v_permlane16_swap_b32 v{KV+8}, v{KV+10}\nv_permlane16_swap_b32 v{KV+9}, v{KV+11}')
    s.vm(f'buffer_store_dwordx4 {vr(KV+8,4)}, v{vPS}, {sr(SWS,4)}, 0 offen sc1', 'pub')
    s.stamp('pub')
    do('pub')
    if bp:
        lastw(s, [f'wq{i}' for i in range(7)]); s('s_barrier'); s.stamp('Bp')
    fill = [('ds', f'ds_read_b64_tr_b16 {vr(WF+2*j,2)}, v{vPr} offset:{2048+512*j}', 'phiq') for j in range(4)]
    fill += f'''v_and_b32 v4, 31, v{vL}
v_lshlrev_b32 v4, 2, v4
s_lshl_b32 s60, s{sG}, 7
s_add_u32 s60, s60, {L_GX}
v_add_u32 v12, s60, v4
s_lshl_b32 s60, s{sBETA}, 7
s_add_u32 s60, s60, {WS_G}
s_cmp_eq_u32 s{sH}, 0
s_cselect_b32 s60, s60, 0x7ffff000
v_add_u32 v11, s60, v4
v_add_u32 v13, {L_KX}, v{v16}'''.split('\n')
    fs = final_setup(0)
    if cfg.get('fsA_q', 1): fill += fs
    bq = cfg.get('bq_at', 27)
    qg[bq] = qg[bq] + [('st', 'Bq'), ('ds', 'ds_read_b32 v31, v12', 'gx')]
    s.run(spread(qg, fill, 2, 26))
    KB = RING
    s('s_mov_b32 vcc_lo, 0\ns_mov_b32 vcc_hi, -1')
    for j in range(8): s(f'v_cvt_pk_bf16_f32 v{KB+j}, v{ACC+2*j}, v{ACC+2*j+1}')
    s(mf32(vr(P,16), vr(WF,4), vr(KB,4), '0'))
    s(mf32(vr(P,16), vr(WF+4,4), vr(KB+4,4), vr(P,16)))
    s.wait(dtag='gx')
    s(f'v_mul_f32 v31, s{sC}, v31\nv_exp_f32 v31, v31\nv_add_f32 v31, 1.0, v31\nv_rcp_f32 v31, v31\nv_sub_f32 v4, 1.0, v31\ns_mov_b32 exec_hi, 0')
    s.vm(f'buffer_store_dword v4, v11, {sr(SWS,4)}, 0 offen sc1')
    s('s_mov_b32 exec_hi, -1')
    s.run(softmax_items(P, 64, PH, 16))
    s.stamp('smq')
    if not cfg.get('fsA_q', 1): s.run(fs)
    do('smq')
    wol = cfg.get('wo_at', 'Bs') == 'Bu'
    if not wol: lastw(s, [f'wo{i}' for i in range(4)])
    s('s_barrier')
    s.stamp('Bs')
    for ks in range(4): s.ds(f'ds_read_b128 {vr(RING+4*ks,4)}, v13 offset:{1024*ks}', f'kx{ks}')
    s(f's_and_b32 s60, s{sHQ}, 1\ns_mul_i32 s60, s60, -3064\ns_add_u32 s60, s60, {6144-1024}')
    for ks in range(4):
        s.wait(dtag=f'kx{ks}')
        s(mf32(vr(P,16), vr(RING+4*ks,4), vr(PH+4*ks,4), vr(P,16) if ks else '0'))
    OP = RING + 16
    s(f'''v_mov_b32 v5, v{P+12}
v_mov_b32 v6, v{P+12}
v_permlane32_swap_b32 v5, v6
v_add_f32 v6, {f2h(1e-6)}, v6
v_rcp_f32 v6, v6
v_mul_f32 v6, v6, v31''')
    for q in range(2):
        for r in range(8 * q, 8 * q + 8): s(f'v_mul_f32 v{P+r}, v{P+r}, v6')
        for j in range(4 * q, 4 * q + 4): s(f'v_cvt_pk_bf16_f32 v{OP+j}, v{P+2*j}, v{P+2*j+1}')
        if q == 0: s.vm(f'buffer_store_dwordx4 {vr(OP,4)}, v{vOS}, {sr(SWS,4)}, 0 offen sc1')
    s('s_mov_b32 exec_hi, 0')
    s.vm(f'buffer_store_dwordx4 {vr(OP+4,4)}, v{vOS}, {sr(SWS,4)}, 0 offen offset:2048 sc1')
    s('s_mov_b32 exec_hi, -1\ns_mov_b32 exec_lo, 0')
    s.vm(f'buffer_store_dwordx2 {vr(OP+4,2)}, v{vOS}, {sr(SWS,4)}, s60 offen sc1')
    s('s_mov_b32 exec_lo, -1')
    s.stamp('ost')
    s(f's_setprio {cfg.get("prioA2", 0)}\ns_cmp_ge_u32 s{sJ}, 7\ns_cbranch_scc1 A_FIN')
    g_issue(s, 'GA')
    do('ost')
    if cfg.get('oissA', 0) == -1: o_issue(s, 'OA')
    if not wol: s.run(wo_reads())
    if cfg.get('oissA', 0) == 0: o_issue(s, 'OA')
    gather(s, 'GA', 1, 31, 29, lambda p: '0 offen', lambda p: [], tail, width=1)
    if wol: s.vdone = 0; lastw(s, [f'wo{i}' for i in range(4)])
    s('s_barrier')
    final_stage(s, 0, cfg, tail)
    s('A_FIN:')
    stamp_store(s)
    s('s_endpgm')
    s.run(tail)

def gen_B(s, cfg, plan):
    AD, AV, T1 = 64, 80, 96
    vWv, vWq, vWo = 15, 14, 112
    vDr, vVW, vGt = 22, 30, 116
    tail = []
    def items(pt):
        out = []
        for it in plan.get(pt, []):
            if it[0] == 'x': out.append(xdma(int(it[1])))
            elif it[0] == 'X':
                d = xdma(int(it[1]), -1); out.append(d[:3]); out.append(d[3:])
            elif it[0] == 'k': out.append(wdma('k', int(it[1]), vWs))
            elif it[0] == 'v': out.append(wdma('v', int(it[1]), vWv))
            elif it[0] == 'q': out.append(wdma('q', int(it[1]), vWq))
            elif it == 'osrc': out.append(wosrc(vWo))
            elif it[0] == 'o': out.append(wodma(int(it[1]), vWo))
            elif it == 'pf': out.append([('fn', lambda: prefetch(s, 'B'))])
            elif it == 'cP':
                out.append([f's_lshl_b32 s60, s{sH}, 2', f's_add_u32 s60, s60, s{sG}', 's_lshl_b32 s60, s60, 4', f's_add_u32 s60, s60, s{sRB}',
                            's_lshl_b32 s60, s60, 10', f's_add_u32 s60, s60, {WS_P}',
                            ('vm', f'buffer_store_dwordx4 {vr(252,4)}, v{v16}, {sr(SWS,4)}, s60 offen sc1', 'clr')])
            elif it[0] == 'c':
                out.append(['s_lshl_b32 s60, s2, 2', f's_add_u32 s60, s60, s{sG}', 's_lshl_b32 s60, s60, 12',
                            ('vm', f'buffer_store_dwordx4 {vr(252,4)}, v{v16}, {sr(SWS,4)}, s60 offen offset:{1024*int(it[1])} sc1', 'clr')])
            elif it == 'dbg': out.append([f's_lshl_b32 s{sTAG+1}, s{sG}, 8', f's_add_u32 s{sTAG+1}, s{sTAG+1}, {WS_F}', f'v_lshlrev_b32 v2, 2, v{vL}', ('vm', f'buffer_load_dword v121, v2, {sr(SWS,4)}, s{sTAG+1} offen sc1', 'dbg')])
            elif it == 'gate':
                out.append(['s_mov_b64 exec, 0x3fff', ('vm', f'buffer_load_dwordx4 {vr(vGt,4)}, v121, {sr(SGW,4)}, 0 offen', 'gate'), 's_mov_b64 exec, -1'])
            else: raise ValueError(it)
        return out
    def do(pt): s.run(items(pt))
    s('B_START:')
    s(f'''s_mov_b32 s{SGW+2}, 896
s_mov_b32 s{SGW+3}, 0x20000
s_mul_i32 s60, s{sG}, 14
v_add_u32 v4, s60, v{vL}
v_lshrrev_b32 v5, 3, v4
v_add_u32 v5, s{sRHO}, v5
v_subrev_u32 v8, 7, v5
v_cmp_lt_u32 vcc, 6, v5
v_cndmask_b32 v5, v5, v8, vcc
v_and_b32 v8, 7, v4
v_lshlrev_b32 v8, 4, v8
v_lshl_add_u32 v121, v5, 7, v8
s_mov_b32 s{sTAG+1}, {WS_F+0x1000}
s_waitcnt lgkmcnt(0)
s_load_dword s{sTAG}, {sr(SWS,2)}, s{sTAG+1}''')
    s.stamp('karg')
    do('pre0')
    s(f'''v_lshrrev_b32 v5, 1, v4
v_and_b32 v8, 1, v4
v_lshlrev_b32 v8, 9, v8
v_lshl_add_u32 v120, v5, 10, v8
v_add_u32 v120, {L_DF + 14*16}, v120''')
    prologue2(s)
    do('pre1')
    wsrc_setup(s)
    s(f'''v_add_u32 v{vWr2}, {L_WV2}, v{vWr}
v_add_u32 v{vWr}, {L_SP}, v{vWr}
v_add_u32 v{vWv}, 896, v{vWs}
s_sub_u32 s60, s{sHQ}, s{sH}
s_mul_i32 s60, s60, 56
s_sub_u32 s60, s60, 896
v_add_u32 v{vWq}, s60, v{vWs}
v_subrev_u32 v28, {2*458752}, v{vX}
v_subrev_u32 v29, {2*458752}, v{vX+1}
v_add_u32 v{vDr}, {L_DF}, v{v16}''')
    do('pre2')
    s(f'''v_and_b32 v4, 15, v{vL}
v_min_u32 v5, 13, v4
s_mul_i32 s60, s{sH}, 14
v_add_u32 v5, s60, v5
v_cmp_eq_u32 vcc, 15, v4
v_mov_b32 v8, 224
v_cndmask_b32 v5, v5, v8, vcc
v_cvt_f32_u32 v5, v5
v_mul_f32 v124, {f2h(1/448)}, v5
v_bfe_u32 v4, v{vL}, 4, 1
v_cvt_f32_u32 v4, v4
v_mul_f32 v4, 0x3e800000, v4
s_lshl_b32 s60, s{sG}, 4
v_lshl_add_u32 v5, v7, 3, s60
v_cvt_f32_u32 v5, v5
v_fma_f32 v125, v5, v124, v4
s_lshl_b32 s60, s{sG}, 10
v_add_u32 v126, s60, v{vDr}''')
    s('v_cos_f32 v123, v124')
    for k in range(4): s(f'v_mov_b32 v{252+k}, -1')
    s('v_add_f32 v123, v123, v123')
    def dfrag(i, R=None):
        R, c = R or 240 + 4 * (i & 1), [4, 5, 8, 9]
        it = [f's_lshr_b32 s60, s{sCX+i}, 1', 'v_cvt_f32_u32 v4, s60', 'v_fma_f32 v4, v4, v124, v125', 'v_add_f32 v5, v4, v124',
              'v_cos_f32 v4, v4', 'v_cos_f32 v5, v5']
        for j in range(4):
            a, b, p, q = c[(2*j) & 3], c[(2*j+1) & 3], c[(2*j+2) & 3], c[(2*j+3) & 3]
            if j < 3: it += [f'v_fma_f32 v{p}, v123, v{b}, -v{a}', f'v_cvt_pk_bf16_f32 v{R+j}, v{a}, v{b}', f'v_fma_f32 v{q}, v123, v{p}, -v{b}']
            else: it += [f'v_cvt_pk_bf16_f32 v{R+j}, v{a}, v{b}']
        it += ['s_mov_b32 exec_lo, 0xffffbfff', 's_mov_b32 exec_hi, 0xffffbfff', ('ds', f'ds_write_b128 v126, {vr(R,4)} offset:{4096*i}', f'dfw{i}'), 's_mov_b64 exec, -1']
        return it
    ndf = cfg.get('ndf', 3)
    for k in range(4): s(f'v_add_u32 v{24+k}, 0x10000, v{vXr+k}')
    dfw = []
    for i in range(ndf):
        d = dfrag(i, 208 + 4 * i if cfg.get('dfdefer') else None)
        if cfg.get('dfdefer'): s.run(d[:-4]); dfw.append(d[-2])
        else: s.run(d)
    do('pre3')
    tw = ['v_lshrrev_b32 v4, 1, v6', 'v_cvt_f32_u32 v122, v4', f'v_mul_f32 v122, {f2h(1/32)}, v122', 'v_and_b32 v5, 1, v6',
          'v_cvt_f32_u32 v5, v5', 'v_mul_f32 v5, 0x3e800000, v5', 'v_cvt_f32_u32 v8, v7', 'v_mul_f32 v8, 4.0, v8', 'v_fma_f32 v127, v122, v8, v5',
          'v_and_b32 v4, 1, v4', 'v_mul_u32_u24 v2, 0x8000, v4', 'v_lshl_or_b32 v2, v2, 16, v2']
    for j in range(4):
        o = 2 * (j & 1) + 8 * (j >> 1)
        tw += [f'v_fmamk_f32 v8, v122, {f2h(o)}, v127', f'v_fmamk_f32 v9, v122, {f2h(o+1)}, v127',
               'v_cos_f32 v4, v8', 'v_cos_f32 v5, v9', 'v_sin_f32 v8, v8', 'v_sin_f32 v9, v9',
               f'v_cvt_pk_bf16_f32 v{T1+j}, v4, v5', f'v_cvt_pk_bf16_f32 v{T1+8+j}, v8, v9',
               f'v_xor_b32 v{T1+4+j}, v2, v{T1+j}', f'v_xor_b32 v{T1+12+j}, v2, v{T1+8+j}']
    tw += f'''v_bfe_u32 v4, v{vL}, 1, 2
v_xor_b32 v4, v4, v7
v_lshlrev_b32 v4, 4, v4
v_lshl_add_u32 v4, v6, 6, v4
s_lshl_b32 s60, s{sG}, 11
s_add_u32 s60, s60, {L_V}
v_add_u32 v{vVW}, s60, v4
v_xor_b32 v{vVW+1}, 32, v{vVW}
s_lshl_b32 s60, s{sHQ}, 2
s_add_u32 s60, s60, s{sG}
s_lshl_b32 s60, s60, 14
s_add_u32 s60, s60, {WS_P}
v_add_u32 v13, s60, v{v16}'''.split('\n')
    clrb = cfg.get('clrb', 'v1')
    def flag(k=0):
        return [f's_lshl_b32 s60, s{sRB}, 4', f's_add_u32 s60, s60, s{sH}', 's_lshl_b32 s61, s60, 2', f's_add_u32 s61, s61, {WS_F}',
                f's_add_u32 s62, s{sTAG}, {k}', f's_cmp_eq_u32 s{sW}, 4', 's_cselect_b32 s60, 1, 0', 'v_mov_b32 v4, s62', 'v_mov_b32 v5, s61',
                's_mov_b32 exec_hi, 0', 's_mov_b32 exec_lo, s60',
                ('vm', f'buffer_store_dword v4, v5, {sr(SWS,4)}, 0 offen sc1', 'flag'), 's_mov_b64 exec, -1']
    lf = {i: [] for i in range(7)}
    for i in range(ndf, 7): lf[i - ndf + cfg.get('dfo', 0)] += dfrag(i)
    tw0 = cfg.get('tw0', 7 - ndf)
    if tw0 < 0: s.run(tw)
    else:
        cuts = [0, 22, 32, 42, 52, len(tw)]
        seg = [tw[cuts[k]:cuts[k+1]] for k in range(5)]
        n = 7 - tw0
        for k in range(5): lf[tw0 + k * n // 5] += seg[k]
    def postB(i): return (flag() if i == clrb else []) + lf[i]
    def dread(sl): return [('ds', f'ds_read_b128 {vr(RING+4*(sl%8),4)}, v{vDr} offset:{1024*sl}', f'df{sl}')]
    s.stamp('dfd')
    if dfw: s.run(['s_mov_b32 exec_lo, 0xffffbfff', 's_mov_b32 exec_hi, 0xffffbfff'] + dfw + ['s_mov_b64 exec, -1'])
    s.wait(vtag='gate')
    s.stamp('gw')
    s('s_mov_b64 exec, 0x3fff')
    s.ds(f'ds_write_b128 v120, {vr(vGt,4)}')
    s('s_mov_b64 exec, -1')
    s.wait(dtag='all')
    s(f's_mul_i32 s{sTAG}, s{sTAG}, 0x9e3779b1\ns_add_u32 s{sTAG}, s{sTAG}, 0x7f4a7c15')
    chunk_loop(s, cfg, dread, 'df', lambda sl: mf32(vr(AD,16), vr(XF+4*sl,4), vr(RING+4*(sl%8),4), vr(AD,16) if sl else '0'),
               items, lambda i: [f'x{i}', f'wk{i}'] + (['clr'] if i == clrb else []) + (['pf'] if i == 6 else []), postB)
    VB = 116
    s.stamp('kdone')
    do('kd')
    nv1 = cfg.get('nv1', 7)
    PK, QK, UA, UP = 240, 248, AV, 240
    s(f'''v_lshlrev_b32 v4, 4, v7
s_lshl_b32 s60, s{sG}, 7
s_add_u32 s60, s60, {L_GX}
v_add_u32 v10, s60, v4
s_lshl_b32 s60, s{sG}, 2
s_add_u32 s60, s60, {L_UX}
v_add_u32 v11, s60, v{v16}
s_lshl_b32 s60, s{sG}, 11
s_add_u32 s60, s60, {L_UX}
v_add_u32 v12, s60, v{v16}''')
    for j in range(8): s(f'v_cvt_pk_bf16_f32 v{PK+j}, v{AD+2*j}, v{AD+2*j+1}')
    for j in range(8): s(f'v_xor_b32 v{QK+j}, 0x80000000, v{PK+j}')
    for j in range(8): s(f'v_permlane16_swap_b32 v{PK+j}, v{QK+j}')
    s.run([mf32(vr(UA,16), vr(T1,4), vr(PK,4), '0'), mf32(vr(UA,16), vr(T1+4,4), vr(PK+4,4), vr(UA,16)),
           mf32(vr(UA,16), vr(T1+8,4), vr(QK,4), vr(UA,16)), mf32(vr(UA,16), vr(T1+12,4), vr(QK+4,4), vr(UA,16))])
    s('s_mov_b32 exec_lo, 0x4000\ns_mov_b32 exec_hi, 0x4000')
    for q in range(4): s.ds(f'ds_write_b128 v10, {vr(AD+4*q,4)} offset:{32*q}')
    s('s_mov_b64 exec, -1')
    s.run(uaddr(8, 44, 45, 46))
    do('st1')
    for i in range(8): s(f'v_cvt_pk_bf16_f32 v{UP+i}, v{UA+2*i}, v{UA+2*i+1}')
    for i in range(8): s.ds(f'ds_write_b32 v11, v{UP+i} offset:{1024*i}')
    lastw(s, [f'wv{i}' for i in range(nv1)] + (['clr'] if clrb == 'v1' else [])); s.wait(dtag='all'); s('s_barrier')
    s.stamp('Bv1')
    s.ds(f'ds_read_b128 {vr(UP+8,4)}, v12', 'u0'); s.ds(f'ds_read_b128 {vr(UP+12,4)}, v12 offset:1024', 'u1')
    if clrb == 'v1': s.run(flag())
    ust = [[('wl', 'u1'), 's_mov_b64 exec, s[46:47]', ('vm', f'buffer_store_dwordx4 {vr(UP+8,4)}, v8, {sr(SWS,4)}, s44 offen sc1'),
            ('vm', f'buffer_store_dwordx4 {vr(UP+12,4)}, v8, {sr(SWS,4)}, s45 offen sc1', 'ust'), 's_mov_b64 exec, -1']]
    fill = items('v0') + ust + items('v1')
    fill += ['s_movk_i32 s48, 4096', 's_movk_i32 s49, 8192', 's_movk_i32 s50, 12288']
    fill += items('v2')
    if nv1 == 7: vg = gemm_groups('v', 0, 28, AV)
    else:
        vg = gemm_groups('v', 0, 4 * nv1, AV)
        g2 = gemm_groups('v', 4 * nv1, 28, AV)
        g2[0] = items('vm') + [('fn', lambda: lastw(s, [f'wv{i}' for i in range(7)])), 's_barrier', ('st', 'Bv2')] + g2[0]
        vg += g2
    s.run(spread(vg, fill, cfg.get('vf0', 1), cfg.get('vf1', 26)))
    s(f'v_mov_b32 v{VB+6}, 0x3f80\nv_mov_b32 v{VB+7}, 0')
    dbge = 'dbg' in s.vt
    assert dbge
    def dbgchk():
        s.wait(vtag='dbg')
        s(f'''v_subrev_u32 v121, s{sTAG}, v121
v_cmp_lt_u32 vcc, 1, v121
s_cbranch_vccnz B_DSPIN
B_DOK:''')
        s.stamp('dbgok')
    if dbge: dbgchk()
    tail += ['B_DSPIN:', 's_movk_i32 s67, 2000', 'B_DSP:', f'buffer_load_dword v121, v2, {sr(SWS,4)}, s{sTAG+1} offen sc1', 's_sub_u32 s67, s67, 1',
             's_waitcnt vmcnt(0)', 's_cmp_eq_u32 s67, 0', 's_cbranch_scc1 B_DOK', f'v_subrev_u32 v121, s{sTAG}, v121', 'v_cmp_lt_u32 vcc, 1, v121', 's_cbranch_vccnz B_DSP', 's_branch B_DOK']
    tail += ['B_USPIN:', 's_movk_i32 s67, 2000', 'B_USP:', f'buffer_load_dword v121, v2, {sr(SWS,4)}, s{sTAG+1} offen sc1', 's_sub_u32 s67, s67, 1',
             's_waitcnt vmcnt(0)', 's_cmp_eq_u32 s67, 0', 's_cbranch_scc1 B_UOK',
             f'v_subrev_u32 v121, s{sTAG}, v121', 'v_cmp_ne_u32 vcc, 1, v121', 's_cbranch_vccnz B_USP', 's_branch B_UOK']
    for u in range(2):
        for j in range(4 * u, 4 * u + 4):
            if j == 6: s('s_mov_b32 exec_hi, 0')
            s(f'v_cvt_pk_bf16_f32 v{VB+j}, v{AV+2*j}, v{AV+2*j+1}')
        if u == 1: s('s_mov_b32 exec_hi, -1')
        s.ds(f'ds_write_b128 v{vVW+u}, {vr(VB+4*u,4)}')
    bp = cfg.get('bp', 0)
    s.stamp('vdone')
    if not bp: lastw(s, [f'wq{i}' for i in range(7)])
    s.wait(dtag='all'); s('s_barrier')
    s.stamp('Bkv')
    GB, SUM, UL = XF, 192, 112
    def psoff(p): return ['0', 's48', 's49', 's50'][p >> 2] + ' offen' + (f' offset:{1024*(p&3)}' if p & 3 else '')
    def pissue():
        s.stamp('gi')
        for p in range(16): s.vm(f'buffer_load_dwordx4 {vr(GB+4*p,4)}, v13, {sr(SWS,4)}, {psoff(p)} sc1', f'PG{p}')
    do('kv0')
    fsB = cfg.get('fsB', 0)
    if fsB == 0: s.run(final_setup(1))
    assert bp
    lastw(s, [f'wq{i}' for i in range(7)] + ['ust']); s('s_barrier')
    s.stamp('Bp')
    s.run(flag(1))
    do('kv')
    if fsB == 1: s.run(final_setup(1))
    pissue()
    do('q')
    if fsB == 2: s.run(final_setup(1))
    s(f'''s_lshl_b32 s60, s{sJ}, 6
v_add_u32 v4, s60, v{vL}
v_sub_u32 v5, 448, v4
s_movk_i32 s61, 224
v_cmp_le_u32 vcc, s61, v4
v_cndmask_b32 v4, v4, v5, vcc
s_sub_u32 s61, 32, s{sCL}
s_and_b32 s61, s61, 31
v_mov_b32 v5, s{sCL}
v_mov_b32 v6, s61
v_cndmask_b32 v5, v5, v6, vcc
v_lshlrev_b32 v4, 4, v4
v_lshl_add_u32 v10, v5, 16, v4
s_lshl_b32 s60, s{sG}, 14
s_add_u32 s60, s60, {WS_U}
v_add_u32 v10, s60, v10
s_lshl_b32 s61, s{sG}, 12
s_add_u32 s61, s61, {L_UT}
v_add_u32 v11, s61, v{v16}
s_lshl_b32 s60, s{sG}, 10
s_add_u32 s60, s60, {L_KX}
v_add_u32 v12, s60, v{v16}
v_mov_b32 v4, 0x3f80
v_mov_b32 v5, 1.0''')
    def usoff(p): return ['0', 's48', 's49', 's50'][p]
    def uissue():
        for p in range(4): s.vm(f'buffer_load_dwordx4 {vr(UL+4*p,4)}, v10, {sr(SWS,4)}, {usoff(p)} offen sc1', f'UG{p}')
        g_issue(s, 'GB')
    fl2 = [('vm', f'buffer_load_dword v121, v2, {sr(SWS,4)}, s{sTAG+1} offen sc1', 'fl2')]
    f2p = cfg.get('fl2_at', 8)
    def work(p):
        it = []
        for j in range(4):
            for hh in range(2):
                acc = f'v{SUM+2*j+hh}'
                it.append(f'v_dot2_f32_bf16 {acc}, v{GB+4*p+j}, v{4+hh}, {acc if p else 0}')
        return it
    if f2p < 0: s.run(fl2)
    gather(s, 'PG', 16, GB, 13, psoff, work, tail)
    if s.stamp_on: s('s_mov_b32 s100, s67')
    for j in range(4): s(f'v_cvt_pk_bf16_f32 v{SUM+8+j}, v{SUM+2*j}, v{SUM+2*j+1}')
    s.ds(f'ds_write_b128 v12, {vr(SUM+8,4)}')
    s.stamp('gok')
    s.vdone = 0
    if f2p >= 0: s.run(fl2)
    do('gk')
    wol = cfg.get('wo_at', 'Bs') == 'Bu'
    if not wol: lastw(s, [f'wo{i}' for i in range(4)])
    s.wait(dtag='all'); s('s_barrier')
    s.stamp('Bs')
    s(f's_cmp_ge_u32 s{sJ}, 7\ns_cbranch_scc1 B_FIN')
    wr = [] if wol else wo_reads()
    nw = cfg.get('woB_pre', 0)
    s.run(wr[:nw])
    s.wait(vtag='fl2')
    s(f'''v_subrev_u32 v121, s{sTAG}, v121
v_cmp_ne_u32 vcc, 1, v121
s_cbranch_vccnz B_USPIN
B_UOK:''')
    s.stamp('UG0')
    uissue()
    do('us')
    s.run(wr[nw:])
    if cfg.get('oissB', 0) == -1: o_issue(s, 'OB')
    for p in range(4):
        s.wait(vtag=f'UG{p}'); s.ds(f'ds_write_b128 v11, {vr(UL+4*p,4)} offset:{1024*p}')
    gather(s, 'GB', 1, 31, 29, lambda p: '0 offen', lambda p: [], tail, width=1)
    if s.stamp_on: s('s_mov_b32 s101, s67')
    s.stamp('uok')
    if cfg.get('oissB', 0) == 0: o_issue(s, 'OB')
    if wol: s.vdone = 0; lastw(s, [f'wo{i}' for i in range(4)])
    s.wait(dtag='all')
    s('s_barrier')
    final_stage(s, 1, cfg, tail)
    s(f'''s_lshl_b32 s60, s2, 3
s_add_u32 s60, s60, s{sW}
s_cmp_lg_u32 s60, 4
s_cbranch_scc1 B_FIN
v_mov_b32 v4, s{sTAG}
v_mov_b32 v5, {WS_F+0x1000}
s_mov_b64 exec, 1
buffer_store_dword v4, v5, {sr(SWS,4)}, 0 offen sc1''')
    s('B_FIN:')
    stamp_store(s)
    s('K_END:\ns_endpgm')
    s.run(tail)

def build(cfg):
    plan = {r: dict(DEF_PLAN[r]) for r in 'AB'}
    for r in 'AB': plan[r].update(cfg.get('plan', {}).get(r, {}))
    a = Sched(); a.stamp_on = cfg.get('stamps', False); a.stamp_base = STB
    EARLY = [f'W{i}' for i in range(7)] + [f'B{i}' for i in range(1, 7)]
    LATE = ['Bkv', 'pub', 'Bq', 'smq', 'Bs', 'ost', 'Bu', 'OA0', 'OB0', 'og', 'end', 'dbgok', 'gi', 'PG0', 'gok', 'uok', 'drain', 'GA0', 'GB0', 'UG0', 'Y']
    if cfg.get('mid'):
        cfg['skipA'] = EARLY[:5] + ['B1', 'B2', 'B3', 'B4', 'B5', 'Bs', 'ost', 'Bu', 'OA0', 'og', 'end', 'GA0', 'Y', 'drain']
        cfg['skipB'] = EARLY[:5] + ['B0', 'B1', 'B2', 'B3', 'B4', 'B5', 'Bs', 'Bu', 'OB0', 'og', 'end', 'GB0', 'UG0', 'Y', 'drain', 'uok']
    LATE += ['smk', 'vdone', 'Bv2', 'Bp']
    if cfg.get('mid'): cfg['skipB'] += ['dfd', 'gw']
    if cfg.get('early'):
        cfg['skipA'] = LATE + ['B1', 'B3', 'B5', 'B4']; cfg['skipB'] = LATE + ['B1', 'B3', 'B5', 'B4', 'B2', 'B6']
    a.stamp_skip = cfg.get('skipA', EARLY + ['GA0', 'Y', 'drain', 'smk', 'Bv2', 'Bp'])
    prologue(a)
    b = Sched(); b.a = a.a; b.stamp_on = a.stamp_on; b.stamp_base = STB; b.stamps = list(a.stamps)
    b.stamp_skip = cfg.get('skipB', EARLY + ['B0', 'Bs', 'Y', 'end', 'GB0', 'kdone', 'vdone', 'Bv2', 'dfd', 'gw'])
    gen_A(a, cfg, plan['A'])
    gen_B(b, cfg, plan['B'])
    assert len(a.stamps) <= 15 and len(b.stamps) <= 15, (a.stamps, b.stamps)
    txt = build_file([dict(name=KN, asm=a.a, grid=256, block=512, lds=163840, vgpr=256, agpr=0)])
    return txt, a, b

if __name__ == '__main__':
    cfg = json.loads(sys.argv[2]) if len(sys.argv) > 2 else {}
    txt, a, b = build(cfg)
    open(sys.argv[1], 'w').write(txt)
    print('instrs', a.a.count, 'nops', a.a.nops)
    print('stamps', a.stamps, b.stamps)
```

```python
import sys, json, struct
sys.path.insert(0, 'work')
from gen_lib import *
BASE = 'gated_mix__spectral_fnet__linear_kernel_hedgehog__prompt'
KN = BASE + '_kernel'
WS_O, WS_U, WS_P, WS_G, WS_ST = 0, 0x200000, 0x400000, 0x510000, 0x600000
WS_N = 0x700000
WS_F2 = 0x520000
WS_F = 0x500000
sTAG, sTH = 36, 30
TAGC = [f's_lshr_b32 s{sTAG}, s{sTAG}, 16', f's_add_u32 s{sTAG}, s{sTAG}, 1', f's_and_b32 s{sTAG}, s{sTAG}, 0x9fff', f's_or_b32 s{sTAG}, s{sTAG}, 0x2000',
        f's_lshl_b32 s{sTH}, s{sTAG}, 16', f's_or_b32 s{sTAG}, s{sTAG}, s{sTH}']
LOG2E = 0x3fb8aa3b
def f2h(x): return '0x%08x' % struct.unpack('<I', struct.pack('<f', x))[0]
def vr(b, n): return 'v[%d:%d]' % (b, b + n - 1)
def sr(b, n): return 's[%d:%d]' % (b, b + n - 1)
def mf32(d, a, b, c): return 'v_mfma_f32_32x32x16_bf16 %s, %s, %s, %s' % (d, a, b, c)
def mf16(d, a, b, c): return 'v_mfma_f32_16x16x32_bf16 %s, %s, %s, %s' % (d, a, b, c)

sW, sRB, sH, sHQ, sBETA, sG, sCL, sJ, sRHO = 3, 4, 5, 6, 7, 8, 9, 10, 11
SX, SWQ, SPHI, SWO, SGW, SWS, SDBG, SOUT = 12, 16, 20, 24, 28, 32, 36, 40
sCX, sCW = 44, 51
sGA = 44
sXM, sWM = 58, 59
T0 = 60
sC, sNC = 68, 69
STB = 70
L_WK, L_DF, L_PHI, L_SP = 81920, 110592, 139264, 143360
L_PH, L_V, L_WV2, L_WQ, L_WO = 0, 16384, 32768, 49152, 81920
L_UX, L_GX, L_KX = 81920, 77824, 152064
L_UT, L_RX = 32768, 0
vL, v16 = 1, 3
vWs, vX, vPhi = 10, 11, 13
vXr, vWr, vWr2, vPr = 16, 20, 21, 22
RING, XF = 32, 128

def stamp_store(s):
    if not s.stamp_on: return
    s('s_mov_b64 exec, -1\ns_waitcnt vmcnt(0)')
    s.stamp('drain')
    s('s_waitcnt lgkmcnt(0)')
    s(f's_lshl_b32 s60, s2, 3\ns_add_u32 s60, s60, s{sW}\ns_lshl_b32 s60, s60, 7\ns_add_u32 s60, s60, {WS_ST}\nv_mov_b32 v4, s60\ns_mov_b64 exec, 1')
    s(f'v_mov_b32 v5, s100\nbuffer_store_dword v5, v4, {sr(SWS,4)}, 0 offen offset:64')
    s(f'v_mov_b32 v5, s67\nbuffer_store_dword v5, v4, {sr(SWS,4)}, 0 offen offset:68')
    s(f'v_mov_b32 v5, s101\nbuffer_store_dword v5, v4, {sr(SWS,4)}, 0 offen offset:72')
    for i in range(len(s.stamps)):
        s(f'v_mov_b32 v5, s{s.stamp_base+2*i}\nbuffer_store_dword v5, v4, {sr(SWS,4)}, 0 offen offset:{4*i}')

def softmax_items(P, EM, PH, T):
    it = []
    mx, mn = T, T + 1
    it.append(f'v_cndmask_b32 v{P+12}, v{P+12}, v{P+14}, vcc')
    it.append(f'v_cndmask_b32 v{P+13}, v{P+13}, v{P+15}, vcc')
    it.append(f'v_max3_f32 v{mx}, v{P}, v{P+1}, v{P+2}')
    it.append(f'v_max3_f32 v{mn}, -v{P}, -v{P+1}, -v{P+2}')
    for k in range(3, 13, 2):
        it.append(f'v_max3_f32 v{mx}, v{mx}, v{P+k}, v{P+k+1}')
        it.append(f'v_max3_f32 v{mn}, v{mn}, -v{P+k}, -v{P+k+1}')
    it.append(f'v_max_f32 v{mx}, v{mx}, v{P+13}')
    it.append(f'v_max_f32 v{mn}, v{mn}, -v{P+13}')
    it.append(f'v_permlane32_swap_b32 v{mx}, v{mn}')
    it.append(f'v_max_f32 v{mx}, v{mx}, v{mn}')
    it.append(f'v_mul_f32 v{mx}, s{sNC}, v{mx}')
    it.append(f'v_mov_b32 v{mn}, v{mx}')
    it.append(f'v_permlane32_swap_b32 v{mx}, v{mn}')
    sp = [T + 2, T + 3]; sm = [T + 4, T + 5]
    for r in range(14):
        it.append(f'v_fma_f32 v{EM+r}, v{P+r}, s{sNC}, v{mn}')
        it.append(f'v_fma_f32 v{P+r}, v{P+r}, s{sC}, v{mx}')
        it.append(f'v_exp_f32 v{EM+r}, v{EM+r}')
        it.append(f'v_exp_f32 v{P+r}, v{P+r}')
        q = r - 1
        if q == 2:
            it.append(f'v_add_f32 v{sm[0]}, v{EM}, v{EM+2}'); it.append(f'v_add_f32 v{sp[0]}, v{P}, v{P+2}')
        elif q == 3:
            it.append(f'v_add_f32 v{sm[1]}, v{EM+1}, v{EM+3}'); it.append(f'v_add_f32 v{sp[1]}, v{P+1}, v{P+3}')
        elif q > 3:
            it.append(f'v_add_f32 v{sm[q&1]}, v{sm[q&1]}, v{EM+q}'); it.append(f'v_add_f32 v{sp[q&1]}, v{sp[q&1]}, v{P+q}')
    it.append(f'v_add_f32 v{sm[0]}, v{sm[0]}, v{sm[1]}'); it.append(f'v_add_f32 v{sp[0]}, v{sp[0]}, v{sp[1]}')
    it.append(f'v_add_f32 v{sm[0]}, v{sm[0]}, v{EM+13}'); it.append(f'v_add_f32 v{sp[0]}, v{sp[0]}, v{P+13}')
    it.append(f'v_permlane32_swap_b32 v{sp[0]}, v{sm[0]}')
    it.append(f'v_add_f32 v{sp[0]}, v{sp[0]}, v{sm[0]}')
    it.append(f'v_rcp_f32 v{sp[0]}, v{sp[0]}')
    it.append(f'v_mov_b32 v{sm[0]}, v{sp[0]}')
    it.append(f'v_permlane32_swap_b32 v{sp[0]}, v{sm[0]}')
    for ks in range(4):
        b = (P if ks < 2 else EM) + 7 * (ks & 1); sc = sp[0] if ks < 2 else sm[0]
        for t in range(4):
            it.append(f'v_mul_f32 v{b+2*t}, v{b+2*t}, v{sc}')
            if t < 3: it.append(f'v_mul_f32 v{b+2*t+1}, v{b+2*t+1}, v{sc}')
            it.append(f'v_cvt_pk_bf16_f32 v{PH+4*ks+t}, v{b+2*t}, ' + (f'v{b+2*t+1}' if t < 3 else '0'))
    return it

def xdma(i, both=0):
    sl = i % 5
    it = [f's_add_u32 m0, s{sXM}, {16384*sl}',
          ('vm', f'buffer_load_dwordx4 v{vX}, {sr(SX,4)}, s{sCX+i} offen lds'),
          ('vm', f'buffer_load_dwordx4 v{vX+1}, {sr(SX,4)}, s{sCX+i} offen offset:1024 lds', f'x{i}')]
    if both:
        it += [f's_add_u32 m0, s{sXM}, {16384*sl+2048*both}',
               ('vm', f'buffer_load_dwordx4 v28, {sr(SX,4)}, s{sCX+i} offen lds'),
               ('vm', f'buffer_load_dwordx4 v29, {sr(SX,4)}, s{sCX+i} offen offset:1024 lds', f'x{i}')]
    return it
def wdst(kind, i):
    if kind == 'k': return L_WK + 4096 * i
    if kind == 'v': return L_SP + 4096 * i if i < 5 else L_WV2 + 4096 * (i - 5)
    return L_WQ + 4096 * i
def wdma(kind, i, vsrc):
    return [f's_add_u32 m0, s{sWM}, {wdst(kind, i)}',
            ('vm', f'buffer_load_dwordx4 v{vsrc}, {sr(SWQ,4)}, s{sCW+i} offen lds', f'w{kind}{i}')]

DEF_PLAN = {
    'A': {'pre0': ['k0', 'x0', 'k1', 'x1'], 'pre1': ['phi', 'k2', 'x2'], 'b0': ['k3', 'x3', 'clr']},
    'B': {'pre0': ['x0', 'gate', 'x1'], 'pre1': ['x2'], 'b0': ['x3', 'k4', 'X4'], 'b1': ['k5', 'X5'], 'b2': ['k6', 'X6'], 'b3': ['v0', 'v1', 'v2', 'v3'],
          'b4': ['v4', 'v5', 'v6'], 'b5': ['q0', 'q1', 'q2'], 'b6': ['q3', 'q4', 'q5', 'q6'], 'v2': ['dbg'], 'kv': ['o0', 'o1', 'o2', 'o3']},
}

def chunk_sgprs(s, lo, hi):
    for i in range(lo, hi):
        if i: s('s_add_u32 s62, s62, 1\ns_cmp_eq_u32 s62, 7\ns_cselect_b32 s62, 0, s62')
        s(f's_lshl_b32 s{sCX+i}, s62, 7\ns_mul_i32 s{sCW+i}, s62, {64*2688}')

def prologue(s):
    s('s_cmp_ge_u32 s2, 256\ns_cbranch_scc1 K_END')
    s.stamp('start')
    s(f'''s_load_dwordx2 {sr(SWQ,2)}, s[0:1], 48
s_load_dwordx2 {sr(SX,2)}, s[0:1], 0
s_load_dwordx2 {sr(SPHI,2)}, s[0:1], 56
s_load_dwordx2 {sr(SGW,2)}, s[0:1], 72
s_load_dwordx2 {sr(SWS,2)}, s[0:1], 96
s_load_dwordx2 {sr(SWO,2)}, s[0:1], 64
s_load_dwordx2 {sr(SOUT,2)}, s[0:1], 80
v_lshrrev_b32 v4, 6, v0
v_and_b32 v{vL}, 63, v0
s_and_b32 s60, s2, 7
v_readfirstlane_b32 s{sW}, v4
s_lshr_b32 s61, s2, 3
s_and_b32 s62, s61, 3
s_lshr_b32 s{sJ}, s61, 2
s_lshl_b32 s{sCL}, s60, 2
s_add_u32 s{sCL}, s{sCL}, s62
s_and_b32 s{sRB}, s{sCL}, 15
s_lshr_b32 s{sH}, s60, 2
s_lshl_b32 s{sH}, s{sH}, 3
s_add_u32 s{sH}, s{sH}, s{sJ}
s_and_b32 s{sG}, s{sW}, 3
s_lshl_b32 s{sBETA}, s{sRB}, 2
s_add_u32 s{sBETA}, s{sBETA}, s{sG}
s_lshl_b32 s62, s{sRB}, 1
s_add_u32 s62, s62, s{sH}
s_mul_i32 s63, s62, 37
s_lshr_b32 s63, s63, 8
s_mul_i32 s63, s63, 7
s_sub_u32 s{sRHO}, s62, s63
s_mov_b32 s62, s{sRHO}''')
    chunk_sgprs(s, 0, 2)
    for r, n in ((SX, 2048*896), (SWQ, 448*2688)):
        s(f's_mov_b32 s{r+2}, {n}\ns_mov_b32 s{r+3}, 0x20000')
    s(f'''v_lshrrev_b32 v6, 3, v{vL}
v_and_b32 v7, 7, v{vL}
v_lshrrev_b32 v8, 4, v{vL}
v_xor_b32 v7, v7, v8
v_lshlrev_b32 v7, 4, v7
s_mov_b32 s63, 57344
v_mad_u32_u24 v{vX}, v6, s63, v7
s_lshr_b32 s64, s{sW}, 2
s_lshl_b32 s{sXM}, s{sG}, 12
s_lshl_b32 s60, s64, 11
s_add_u32 s{sXM}, s{sXM}, s60
s_mul_i32 s60, s{sBETA}, 896
s_mul_i32 s61, s64, {2*458752}
s_add_u32 s60, s60, s61
v_add_u32 v{vX}, s60, v{vX}
v_xor_b32 v{vX+1}, 64, v{vX}
v_add_u32 v{vX+1}, {458752-1024}, v{vX+1}
s_cmp_ge_u32 s{sW}, 4
s_cbranch_scc1 B_START''')

def wsrc_setup(s):
    s(f'''v_lshrrev_b32 v4, 2, v{vL}
v_and_b32 v5, 3, v{vL}
v_lshlrev_b32 v5, 4, v5
v_min_u32 v5, 40, v5
s_movk_i32 s63, 2688
v_mad_u32_u24 v{vWs}, v4, s63, v5
s_mul_i32 s60, s{sG}, 43008
s_mul_i32 s61, s{sH}, 56
s_add_u32 s60, s60, s61
s_add_u32 s60, s60, 896
v_add_u32 v{vWs}, s60, v{vWs}
s_lshl_b32 s{sWM}, s{sG}, 10''')

def prologue2(s):
    chunk_sgprs(s, 2, 7)
    for r, n in ((SPHI, 25088), (SWO, 401408), (SWS, WS_N), (SOUT, 2048*896)):
        s(f's_mov_b32 s{r+2}, {n}\ns_mov_b32 s{r+3}, 0x20000')
    s(f'''s_xor_b32 s{sHQ}, s{sH}, 1
v_lshlrev_b32 v{v16}, 4, v{vL}
v_and_b32 v6, 31, v{vL}
v_lshrrev_b32 v7, 5, v{vL}
v_bfe_u32 v8, v{vL}, 1, 3
v_xor_b32 v8, v8, v7
v_lshlrev_b32 v8, 4, v8
v_lshl_add_u32 v{vXr}, v6, 7, v8
s_lshl_b32 s60, s{sG}, 12
v_add_u32 v{vXr}, s60, v{vXr}
v_xor_b32 v{vXr+1}, 32, v{vXr}
v_xor_b32 v{vXr+2}, 64, v{vXr}
v_xor_b32 v{vXr+3}, 0x60, v{vXr}
v_bfe_u32 v8, v{vL}, 4, 1
v_and_b32 v9, 3, v{vL}
v_lshl_add_u32 v8, v8, 2, v9
v_cmp_lt_u32 vcc, 5, v8
v_cndmask_b32 v8, v8, 7, vcc
v_lshlrev_b32 v8, 3, v8
v_bfe_u32 v9, v{vL}, 2, 2
v_lshl_add_u32 v8, v9, 6, v8
v_lshl_add_u32 v{vWr}, v7, 9, v8
s_mov_b32 s{sC}, {LOG2E}
s_mov_b32 s{sNC}, {LOG2E | 0x80000000}''')

def prefetch(s, role):
    if role == 'A':
        s(f'''s_lshr_b32 s61, s2, 3
v_lshrrev_b32 v30, 4, v{vL}
s_lshl_b32 s60, s{sJ}, 2
v_add_u32 v30, s60, v30
v_lshlrev_b32 v30, 6, v30
v_bfe_u32 v31, v{vL}, 2, 2
v_add_u32 v30, v30, v31
s_lshl_b32 s60, s{sRB}, 2
v_add_u32 v30, s60, v30
s_movk_i32 s60, 896
v_mul_u32_u24 v30, s60, v30
v_and_b32 v31, 3, v{vL}
v_lshl_add_u32 v30, v31, 7, v30
s_and_b32 s60, s{sW}, 1
s_lshl_b32 s60, s60, 9
s_mul_i32 s61, s61, 12544
s_lshl_b32 s63, s60, 4
s_add_u32 s61, s61, s63
v_lshlrev_b32 v31, 7, v{vL}
s_cmp_ge_u32 s{sW}, 2
s_cbranch_scc1 PFA_O
buffer_load_dword v96, v30, {sr(SX,4)}, s60 offen
s_branch PFA_E
PFA_O:
buffer_load_dword v96, v31, {sr(SWO,4)}, s61 offen
PFA_E:''')
    else:
        s(f'''s_lshr_b32 s61, s2, 3
s_mul_i32 s61, s61, {14*2688}
s_lshr_b32 s60, s{sH}, 3
s_mul_i32 s60, s60, 384
s_add_u32 s61, s61, s60
s_mul_i32 s60, s{sG}, 896
s_add_u32 s61, s61, s60
v_lshrrev_b32 v30, 2, v{vL}
s_movk_i32 s60, 2688
v_mul_u32_u24 v30, s60, v30
v_and_b32 v31, 3, v{vL}
v_lshl_add_u32 v30, v31, 7, v30
buffer_load_dword v250, v30, {sr(SWQ,4)}, s61 offen''')
    s.nvm += 1; s.vt['pf'] = s.nvm

def uaddr(va, s0, s1):
    return f'''v_and_b32 v9, 15, v{vL}
v_lshlrev_b32 v{va}, 4, v9
v_bfe_u32 v9, v{vL}, 4, 1
v_lshl_add_u32 v{va}, v9, 20, v{va}
v_lshl_add_u32 v{va}, v7, 17, v{va}
s_lshl_b32 s{s0}, s{sG}, 18
s_lshl_b32 s{s1}, s{sRB}, 12
s_add_u32 s{s0}, s{s0}, s{s1}
s_lshl_b32 s{s1}, s{sH}, 8
s_add_u32 s{s0}, s{s0}, s{s1}
s_add_u32 s{s0}, s{s0}, {WS_U}
s_add_u32 s{s1}, s{s0}, 65536'''.split('\n')

def xreads(i):
    sl = i % 5
    return [('ds', f'ds_read_b128 {vr(XF+16*i+4*k,4)}, v{vXr+k} offset:{16384*sl}' if sl < 4 else f'ds_read_b128 {vr(XF+16*i+4*k,4)}, v{24+k}', f'xf{4*i+k}')
            for k in range(4)]

def chunk_loop(s, cfg, rd, fk, mf, items, pre, post):
    for i in range(7):
        t = [x for x in pre(i) if x in s.vt]
        lazy = cfg.get('lazy', 0)
        dt = ('all' if i else None) if not lazy else (f'dfw{i}' if f'dfw{i}' in s.dt else None)
        s.wait(vtag=max(t, key=lambda x: s.vt[x]) if t else None, dtag=dt)
        s.stamp(f'W{i}')
        s.run(items(f'w{i}'))
        s('s_barrier')
        s.stamp(f'B{i}')
        xr = xreads(i)
        reads = [[xr[k]] + rd(4 * i + k) for k in range(4)]
        dm = items(f'b{i}')
        if i == 0: s.run(reads); s.run(post(i)); s.run(dm)
        else:
            mf_ = mf
            if lazy: mf = lambda sl: [('wl', f'{fk}{sl}'), mf_(sl)]
            seq = [[mf(4 * (i - 1))], reads[0], reads[1], [mf(4 * (i - 1) + 1)], reads[2], reads[3], [mf(4 * (i - 1) + 2)], post(i)]
            if cfg.get('il', 0):
                one = []; cur = []
                for d in dm:
                    for x in d:
                        cur.append(x)
                        if isinstance(x, tuple) and x[0] == 'vm': one.append(cur); cur = []
                assert not cur
                po = post(i); n = len(one); m = len(po)
                seq = []
                rs = [reads[0] + reads[1], reads[2] + reads[3], [], []] if cfg['il'] == 1 else reads
                for k in range(4):
                    pf = cfg.get('pofirst', 3)
                    if pf == 3: seq += [[mf(4 * (i - 1) + k)], rs[k], one[k * n // 4:(k + 1) * n // 4], po if k == 3 else []]
                    else: seq += [[mf(4 * (i - 1) + k)], rs[k], po if k == pf else [], one[k * n // 4:(k + 1) * n // 4]]
            elif cfg.get('dma_mid', 1): seq += [dm[:len(dm)//2], [mf(4 * (i - 1) + 3)], dm[len(dm)//2:]]
            else: seq += [[mf(4 * (i - 1) + 3)], dm]
            s.run(seq)
            mf = mf_
    for k in range(4):
        s.wait(dtag=f'{fk}{24+k}')
        s(mf(24 + k))

def wread(kind, sl):
    r = RING + 4 * (sl % 8)
    if kind == 'k': b, o = vWr, 1024 * sl
    elif kind == 'q': b, o = vWr2, 1024 * sl
    else: b, o = (vWr, 1024 * sl) if sl < 20 else (vWr2, 1024 * (sl - 20))
    return [('ds', f'ds_read_b64_tr_b16 {vr(r,2)}, v{b} offset:{o}'), ('ds', f'ds_read_b64_tr_b16 {vr(r+2,2)}, v{b} offset:{o+256}', f'{kind}f{sl}')]

def gemm_groups(kind, lo, hi, acc, pre=4):
    g = []; head = []
    for sl in range(lo, min(lo + pre, hi)): head += wread(kind, sl)
    for sl in range(lo, hi):
        it = []
        if sl == lo: it += head
        it.append(('wl', f'{kind}f{sl}'))
        it.append(mf32(vr(acc,16), vr(RING+4*(sl%8),4), vr(XF+4*sl,4), vr(acc,16) if sl else '0'))
        if sl + pre < hi: it += wread(kind, sl + pre)
        g.append(it)
    return g

def gather(s, nm, n, reg, vaddr, soff, work, tail, cnt=400, width=4, ldf=None, mask=False):
    op = {4: 'buffer_load_dwordx4', 2: 'buffer_load_dwordx2'}[width]
    def rg(p): return vr(reg + width * p, width)
    def ld(p):
        if ldf: return ldf(p)
        return [f'{op} {rg(p)}, v{vaddr}, {sr(SWS,4)}, {soff(p)} sc1']
    def chk(p):
        if width == 4:
            return [f'v_cmp_ne_u32_sdwa vcc, v{reg+4*p+3}, s{sTAG} src0_sel:WORD_1 src1_sel:WORD_1'] + \
                   ([f'v_and_b32 v{reg+4*p+3}, 0xffff, v{reg+4*p+3}'] if mask else []) + [f's_cbranch_vccnz {nm}_RT{p}']
        return [f'v_cmp_ne_u32 vcc, s{sTAG}, v{reg+2*p+1}', f's_cbranch_vccnz {nm}_RT{p}']
    s(f's_movk_i32 s67, {cnt}')
    extra = s.nvm - s.vt[f'{nm}{n-1}']
    two = extra > 0
    R = 'R' if two else ''
    for p in range(n):
        s(f'{nm}_CK{p}:')
        s.vdone = 0
        s.wait(vtag=f'{nm}{p}')
        s.run(chk(p)); s(f'{nm}_OK{p}:')
        if p == 0: s.stamp(nm + '0')
        w = work(p)
        s.run(w)
        t = [f'{nm}_RT{p}:', 's_sub_u32 s67, s67, 1', 's_cmp_eq_u32 s67, 0', f's_cbranch_scc1 {nm}_GU{p}', 's_waitcnt vmcnt(0)']
        for q in range(p, n): t += ld(q)
        t += [f's_branch {nm}_{R}CK{p}', f'{nm}_GU{p}:', 's_movk_i32 s67, 1', 's_waitcnt vmcnt(0)', f's_branch {nm}_{R}OK{p}']
        tail += t
    if two:
        s(f'{nm}_JOIN:')
        for p in range(n):
            w = work(p)
            assert all(isinstance(x, str) for x in w)
            tail += [f'{nm}_RCK{p}:', f's_waitcnt vmcnt({sum(len(ld(q)) for q in range(p + 1, n))})'] + chk(p) + [f'{nm}_ROK{p}:'] + w
        tail.append(f's_branch {nm}_JOIN')

def final_setup(kh):
    T2 = 96
    it = f'''s_lshr_b32 s60, s{sG}, 1
s_lshl_b32 s60, s60, 5
s_add_u32 s60, s60, s{sCL}
s_and_b32 s61, s{sG}, 1
s_lshl_b32 s62, s61, 10
s_add_u32 s63, s62, s60
v_and_b32 v4, 15, v{vL}
v_lshrrev_b32 v5, 4, v{vL}
v_lshl_add_u32 v6, v4, 6, s63
v_cvt_f32_u32 v7, v6
v_mul_f32 v7, {f2h(1/2048)}, v7
v_lshl_add_u32 v8, v5, 2, {32*kh}
v_cvt_f32_u32 v8, v8
v_mul_f32 v8, v8, v7
s_cmp_ge_u32 s{sJ}, 4
s_cselect_b32 s64, 0x80000000, 0
s_cmp_ge_u32 s{sJ}, 3
s_cselect_b32 s65, 0x80000000, 0
s_movk_i32 s66, 896
v_mul_u32_u24 v15, s66, v6
v_and_b32 v6, 1, v5
v_lshl_add_u32 v15, v6, 5, v15
v_lshrrev_b32 v6, 1, v5
v_lshl_add_u32 v15, v6, 4, v15
s_lshl_b32 s66, s{sJ}, 7
s_add_u32 s66, s66, {64*kh}
v_add_u32 v15, s66, v15
s_lshl_b32 s60, s60, 1
s_add_u32 s60, s60, s61
s_lshl_b32 s66, s60, 7
s_add_u32 s66, s66, {WS_G}
v_lshl_add_u32 v29, v4, 3, s66
s_lshl_b32 s60, s60, 14
s_add_u32 s60, s60, {WS_O+8192*kh}
v_add_u32 v14, s60, v{v16}
v_lshlrev_b32 v23, 4, v4
v_lshl_add_u32 v23, v5, 10, v23
v_add_u32 v23, {L_UT+8192*kh}, v23'''.split('\n')
    for u in range(2):
        for jj in range(4):
            r = T2 + 4 * u + jj
            it += [f'v_fmamk_f32 v9, v7, {f2h(16*u+jj)}, v8' if (u or jj) else 'v_mov_b32 v9, v8', 'v_cos_f32 v6, v9', 'v_sin_f32 v9, v9',
                   f'v_cvt_pk_bf16_f32 v{r}, v6, v9', f'v_xor_b32 v{r+8}, s65, v{r}', f'v_xor_b32 v{r}, s64, v{r}']
    it += f'''v_bfe_u32 v6, v{vL}, 2, 2
v_mad_u32_u24 v6, v5, 7, v6
v_bfe_u32 v7, v{vL}, 3, 2
v_bfe_u32 v8, v{vL}, 1, 1
v_lshl_or_b32 v8, v7, 1, v8
v_lshlrev_b32 v8, 4, v8
v_lshl_add_u32 v8, v6, 7, v8
v_and_b32 v7, 1, v{vL}
v_lshl_add_u32 v8, v7, 3, v8
v_add_u32 v24, {L_WO + 128*224*kh}, v8
v_xor_b32 v25, 32, v24
v_xor_b32 v26, 64, v24
v_xor_b32 v27, 0x60, v24
s_lshl_b32 s60, s{sW}, 11
v_add_u32 v28, s60, v{v16}
v_xor_b32 v30, 0x2000, v28'''.split('\n')
    return it

def wo_reads():
    it = []
    for j in range(8):
        for ct in range(4):
            r = XF + 16 * j + 4 * ct
            for u in range(2):
                it.append(('ds', f'ds_read_b64_tr_b16 {vr(r+2*u,2)}, v{24 + ct} offset:{128*(28*j+4*u)}', f'wo{j}_{ct}'))
    return it

OG = 32
def osoff(p): return ['0', 's60'][p >> 2] + ' offen' + (f' offset:{1024*(p&3)}' if p & 3 else '')
def old(p): return [f'buffer_load_dwordx4 {vr(OG+4*p,4)}, v14, {sr(SWS,4)}, {osoff(p)} sc1']
def o_issue(s, nm):
    s('s_movk_i32 s60, 4096')
    for p in range(8):
        for x in old(p): s.vm(x, f'{nm}{p}')
def g_issue(s, nm): s.vm(f'buffer_load_dwordx2 v[20:21], v29, {sr(SWS,4)}, 0 offen sc1', f'{nm}0')

def final_stage(s, kh, cfg, tail):
    nm = 'OA' if kh == 0 else 'OB'
    UF, T2, ACC = 64, 96, 112
    s.stamp('Bu')
    for u in range(2):
        for ct in range(4):
            s.ds(f'ds_read_b128 {vr(UF+16*u+4*ct,4)}, v23 offset:{4096*u+256*ct}', f'uf{u}{ct}')
    if f'{nm}0' not in s.vt and cfg.get('oiss', 1) == 1: o_issue(s, nm)
    if cfg.get('wo_at', 'Bs') == 'Bu': s.run(wo_reads())
    for u in range(2):
        for ct in range(4):
            s.wait(dtag=f'uf{u}{ct}')
            s(mf16(vr(ACC+4*ct,4), vr(UF+16*u+4*ct,4), vr(T2+8*(ct>>1)+4*u,4), vr(ACC+4*ct,4) if u else '0'))
    if f'{nm}0' not in s.vt: o_issue(s, nm)
    for r in range(16): s(f'v_mul_f32 v{ACC+r}, v{ACC+r}, v20')
    s.wait(dtag='all')
    s.stamp('Y')
    give = (2, 3) if kh == 0 else (0, 1)
    keep = (0, 1) if kh == 0 else (2, 3)
    def work(p):
        return [mf16(vr(ACC+4*ct,4), vr(XF+16*p+4*ct,4), vr(OG+4*p,4), vr(ACC+4*ct,4)) for ct in give + keep]
    gather(s, nm, 8, OG, 14, osoff, work, tail, ldf=old, mask=True)
    s.stamp('og')
    for k, ct in enumerate(give): s.ds(f'ds_write_b128 v28, {vr(ACC+4*ct,4)} offset:{L_RX+1024*k}')
    s.wait(dtag='all'); s('s_barrier')
    for k in range(2): s.ds(f'ds_read_b128 {vr(UF+4*k,4)}, v30 offset:{L_RX+1024*k}', f'rx{k}')
    for k, ct in enumerate(keep):
        s.wait(dtag=f'rx{k}')
        for r in range(4): s(f'v_add_f32 v{ACC+4*ct+r}, v{ACC+4*ct+r}, v{UF+4*k+r}')
        s(f'v_cvt_pk_bf16_f32 v{OG+2*k}, v{ACC+4*ct}, v{ACC+4*ct+1}\nv_cvt_pk_bf16_f32 v{OG+2*k+1}, v{ACC+4*ct+2}, v{ACC+4*ct+3}')
    s(f'v_permlane16_swap_b32 v{OG}, v{OG+2}\nv_permlane16_swap_b32 v{OG+1}, v{OG+3}')
    s.vm(f'buffer_store_dwordx4 {vr(OG,4)}, v15, {sr(SOUT,4)}, 0 offen')
    s.stamp('end')

def wosrc(vWo):
    return f'''v_lshrrev_b32 v4, 3, v{vL}
v_and_b32 v5, 7, v{vL}
v_and_b32 v8, 2, v4
v_xor_b32 v5, v5, v8
v_lshlrev_b32 v5, 4, v5
s_movk_i32 s60, 896
v_mad_u32_u24 v{vWo}, v4, s60, v5
v_xor_b32 v5, 64, v{vWo}
v_add_u32 v{vWo+1}, 5376, v5
v_add_u32 v{vWo+2}, {2*5376}, v{vWo}
v_add_u32 v{vWo+3}, {3*5376}, v5
s_mul_i32 s38, s{sG}, {112*896}
s_lshl_b32 s60, s{sJ}, 7
s_add_u32 s38, s38, s60
s_mul_i32 s39, s{sG}, {112*128}
s_add_u32 s39, s39, {L_WO}'''.split('\n')
def wodma(k, vWo):
    it = [f's_add_u32 m0, s39, {3584*k}', f's_add_u32 s61, s38, {28*896*k}', 's_mov_b32 exec_hi, 0xffffff']
    for u in range(4):
        it.append(('vm', f'buffer_load_dwordx4 v{vWo+u}, {sr(SWO,4)}, s61 offen offset:{896*u} lds', f'wo{k}'))
    return it + ['s_mov_b32 exec_hi, -1']

def lastw(s, tags):
    t = [x for x in tags if x in s.vt]
    if t: s.wait(vtag=max(t, key=lambda x: s.vt[x]))

def gen_A(s, cfg, plan):
    ACC, P, EM, PH, WF, T = 64, 80, 96, 112, 248, 24
    KB = EM
    vPW, vPR, vVR, vPS, vOS = 240, 244, 245, 247, 2
    def M1(pt): return P if pt.startswith('pre') or pt[0] in 'wb' else 120
    vWv = 15
    tail = []
    clrb = cfg.get('clrb', 'v1')
    def items(pt):
        out = []
        for it in plan.get(pt, []):
            if it[0] == 'x': out.append(xdma(int(it[1])))
            elif it[0] == 'X':
                d = xdma(int(it[1]), 1); out.append(d[:3]); out.append(d[3:])
            elif it[0] == 'k': out.append(wdma('k', int(it[1]), vWs))
            elif it[0] == 'v': out.append(wdma('v', int(it[1]), vWv))
            elif it[0] == 'q': out.append(wdma('q', int(it[1]), 14))
            elif it == 'phi':
                out.append([f's_add_u32 m0, s{sWM}, {L_PHI}', ('vm', f'buffer_load_dwordx4 v{vPhi}, {sr(SPHI,4)}, 0 offen lds', 'phi')])
            elif it == 'pf': out.append([('fn', lambda: prefetch(s, 'A'))])
            elif it == 'tg': out.append(['s_waitcnt lgkmcnt(0)'] + TAGC)
            elif it == 'osrc': out.append(wosrc(64))
            elif it[0] == 'o': out.append(wodma(int(it[1]), 64))
            elif it == 'tlb':
                out.append([f's_load_dword s66, {sr(SWS,2)}, 0', f's_mov_b32 s60, {WS_U}', f's_load_dword s66, {sr(SWS,2)}, s60',
                            f's_mov_b32 s60, {WS_P}', f's_load_dword s66, {sr(SWS,2)}, s60', f's_load_dword s66, {sr(SOUT,2)}, 0'])
            else: raise ValueError(it)
        return out
    def do(pt): s.run(items(pt))
    def flag(): return []
    s(f's_setprio {cfg.get("prioA", 2)}')
    wsrc_setup(s)
    s(f'v_add_u32 v28, {2*458752}, v{vX}\nv_add_u32 v29, {2*458752}, v{vX+1}')
    s(f'''v_lshlrev_b32 v{v16}, 4, v{vL}
s_lshl_b32 s64, s{sH}, 2
s_add_u32 s64, s64, s{sG}
s_lshl_b32 s64, s64, 4
s_add_u32 s64, s64, s{sRB}
s_lshl_b32 s64, s64, 10
s_add_u32 s64, s64, {WS_P}
s_mov_b32 s{SWS+2}, {WS_N}
s_mov_b32 s{SWS+3}, 0x20000
s_mov_b32 s{sTAG+1}, {WS_F+0x1000}''')
    s('s_waitcnt lgkmcnt(0)')
    s.stamp('karg')
    do('pre0')
    s(f's_load_dword s{sTAG}, {sr(SWS,2)}, s{sTAG+1}')
    prologue2(s)
    s(f'''s_and_b32 s60, s{sG}, 1
s_lshl_b32 s60, s60, 4
v_add_u32 v9, s60, v4
s_cmp_lt_u32 s{sG}, 2
s_cselect_b32 s61, s{sH}, s{sHQ}
s_mul_i32 s61, s61, 1568
v_mad_u32_u24 v{vPhi}, v9, 56, v5
v_add_u32 v{vPhi}, s61, v{vPhi}
v_cmp_lt_u32 vcc, 27, v9
v_bfrev_b32 v9, 1
v_cndmask_b32 v{vPhi}, v{vPhi}, v9, vcc''')
    do('pre1')
    s(f'''v_lshl_add_u32 v{vPr}, v7, 8, v8
v_add_u32 v{vPr}, {L_PHI}, v{vPr}
v_add_u32 v{vWr2}, {L_WQ}, v{vWr}
v_add_u32 v{vWr}, {L_WK}, v{vWr}
v_add_u32 v{vWv}, 896, v{vWs}
s_sub_u32 s60, s{sHQ}, s{sH}
s_mul_i32 s60, s60, 56
s_sub_u32 s60, s60, 896
v_add_u32 v14, s60, v{vWs}
v_add_u32 v{vPS}, s64, v{v16}''')
    s(f'''v_and_b32 v9, 15, v{vL}
v_lshlrev_b32 v9, 4, v9
v_lshl_add_u32 v9, v7, 8, v9
v_lshrrev_b32 v4, 4, v6
v_lshl_add_u32 v9, v4, 14, v9
s_lshl_b32 s60, s{sBETA}, 15
s_lshl_b32 s61, s{sHQ}, 10
s_add_u32 s60, s60, s61
v_add_u32 v{vOS}, s60, v9
v_and_b32 v4, 7, v{vL}
v_xor_b32 v4, v4, v7
v_lshlrev_b32 v4, 4, v4
v_lshl_add_u32 v4, v6, 7, v4
s_lshl_b32 s60, s{sG}, 12
v_add_u32 v{vPW}, s60, v4
v_xor_b32 v{vPW+1}, 32, v{vPW}
v_xor_b32 v{vPW+2}, 64, v{vPW}
v_xor_b32 v{vPW+3}, 0x60, v{vPW}
v_lshrrev_b32 v4, 2, v{vL}
v_and_b32 v5, 7, v4
v_bfe_u32 v9, v{vL}, 1, 1
s_lshl_b32 s60, s{sG}, 1
v_or_b32 v9, s60, v9
v_xor_b32 v9, v9, v5
v_lshlrev_b32 v9, 4, v9
v_lshl_add_u32 v9, v4, 7, v9
v_and_b32 v8, 1, v{vL}
v_lshl_add_u32 v{vPR}, v8, 3, v9
v_lshrrev_b32 v5, 1, v5
v_xor_b32 v5, v5, v8
v_lshlrev_b32 v5, 4, v5
v_lshl_add_u32 v5, v4, 6, v5
v_bfe_u32 v9, v{vL}, 1, 1
v_lshl_add_u32 v5, v9, 3, v5
v_add_u32 v{vVR}, {L_V}, v5
v_xor_b32 v{vVR+1}, 32, v{vVR}''')
    for k in range(4): s(f'v_add_u32 v{24+k}, 0x10000, v{vXr+k}')
    do('pre2')
    phib = cfg.get('phib', 2)
    def pre(i): return [f'x{i}', f'wk{i}'] + (['phi'] if i == phib else []) + (['clr'] if i == clrb else []) + (['pf'] if i == 6 else [])
    def post(i):
        it = []
        if i == phib: it += [('ds', f'ds_read_b64_tr_b16 {vr(WF+2*j,2)}, v{vPr} offset:{512*j}', 'phik') for j in range(4)]
        if i == clrb: it += flag()
        return it
    chunk_loop(s, cfg, lambda sl: wread('k', sl), 'kf', lambda sl: mf32(vr(ACC,16), vr(RING+4*(sl%8),4), vr(XF+4*sl,4), vr(ACC,16) if sl else '0'),
               items, pre, post)
    s.stamp('kdone')
    do('kd')
    s('s_mov_b32 vcc_lo, 0\ns_mov_b32 vcc_hi, -1')
    for j in range(8): s(f'v_cvt_pk_bf16_f32 v{KB+j}, v{ACC+2*j}, v{ACC+2*j+1}')
    s(mf32(vr(P,16), vr(WF,4), vr(KB,4), '0'))
    s(mf32(vr(P,16), vr(WF+4,4), vr(KB+4,4), vr(P,16)))
    do('pk')
    nv1 = cfg.get('nv1', 7)
    for n, it in enumerate(softmax_items(P, EM, PH, T)):
        if n == cfg.get('bv1_at', 0):
            lastw(s, [f'wv{i}' for i in range(nv1)] + (['clr'] if clrb == 'v1' else [])); s('s_barrier')
            s.stamp('Bv1')
            if clrb == 'v1': s.run(flag())
        if nv1 < 7 and n == cfg.get('bv2_at', 90):
            s.stamp('vm0'); lastw(s, [f'wv{i}' for i in range(7)]); s.stamp('vm2'); s('s_barrier')
            s.stamp('Bv2')
        s(it)
        for ks in range(4):
            last = 4 * ks + 3
            if it.startswith(f'v_cvt_pk_bf16_f32 v{PH+last},'):
                assert n > cfg.get('bv1_at', 0)
                s.ds(f'ds_write_b128 v{vPW+ks}, {vr(PH+4*ks,4)}')
    s.stamp('smk')
    bp = cfg.get('bp', 0)
    if not bp: lastw(s, [f'wq{i}' for i in range(7)])
    s.wait(dtag='all'); s('s_barrier')
    s.stamp('Bkv')
    AF, BF, KV = RING, RING + 16, P
    for gp in range(4):
        s.ds(f'ds_read_b64_tr_b16 {vr(AF+4*gp,2)}, v{vPR} offset:{4096*gp}')
        s.ds(f'ds_read_b64_tr_b16 {vr(AF+4*gp+2,2)}, v{vPR} offset:{4096*gp+2048}')
        for t in range(2):
            s.ds(f'ds_read_b64_tr_b16 {vr(BF+8*gp+4*t,2)}, v{vVR+t} offset:{2048*gp}')
            s.ds(f'ds_read_b64_tr_b16 {vr(BF+8*gp+4*t+2,2)}, v{vVR+t} offset:{2048*gp+1024}', f'kv{gp}{t}')
    for gp in range(4):
        for t in range(2):
            s.wait(dtag=f'kv{gp}{t}')
            s(mf16(vr(KV+4*t,4), vr(AF+4*gp,4), vr(BF+8*gp+4*t,4), vr(KV+4*t,4) if gp else '0'))
    qg = gemm_groups('q', 0, 28, ACC)
    if not bp:
        head = qg[0][:8]; qg[0] = qg[0][8:]
        s.run(head)
    for j in range(4): s(f'v_cvt_pk_bf16_f32 v{KV+8+j}, v{KV+2*j}, v{KV+2*j+1}')
    s(f'v_permlane16_swap_b32 v{KV+9}, v{KV+11}\nv_permlane16_swap_b32 v{KV+8}, v{KV+10}\nv_and_b32 v{KV+11}, 0xffff, v{KV+11}\nv_or_b32 v{KV+11}, s{sTH}, v{KV+11}')
    s.vm(f'buffer_store_dwordx4 {vr(KV+8,4)}, v{vPS}, {sr(SWS,4)}, 0 offen sc1', 'pub')
    s.stamp('pub')
    if 'pA1' in cfg: s(f's_setprio {cfg["pA1"]}')
    do('pub')
    if bp:
        lastw(s, [f'wq{i}' for i in range(7)]); s('s_barrier'); s.stamp('Bp')
    fill = items('p0') + items('p1')
    fill += [('ds', f'ds_read_b64_tr_b16 {vr(WF+2*j,2)}, v{vPr} offset:{2048+512*j}', 'phiq') for j in range(4)]
    fill += f'''v_and_b32 v4, 31, v{vL}
v_lshlrev_b32 v4, 2, v4
s_lshl_b32 s60, s{sG}, 7
s_add_u32 s60, s60, {L_GX}
v_add_u32 v12, s60, v4
s_lshl_b32 s60, s{sBETA}, 8
s_add_u32 s60, s60, {WS_G}
s_cmp_eq_u32 s{sH}, 0
s_cselect_b32 s60, s60, 0x7ffff000
v_lshl_add_u32 v11, v4, 1, s60
v_bfe_u32 v4, v{vL}, 4, 1
v_bfe_u32 v5, v{vL}, 2, 1
v_lshl_add_u32 v4, v4, 1, v5
v_bfe_u32 v5, v{vL}, 3, 1
v_and_b32 v6, 3, v{vL}
v_lshl_add_u32 v5, v5, 2, v6
v_mad_u32_u24 v4, v4, 7, v5
v_cmp_eq_u32 vcc, 7, v5
v_cndmask_b32 v4, v4, 28, vcc
v_lshrrev_b32 v5, 5, v{vL}
v_lshl_add_u32 v4, v5, 5, v4
v_lshlrev_b32 v4, 4, v4
v_add_u32 v13, {L_KX}, v4'''.split('\n')
    fs = final_setup(0)
    if cfg.get('fsA_q', 1): fill += fs
    bq = cfg.get('bq_at', 27)
    qg[bq] = qg[bq] + [('st', 'Bq'), ('ds', 'ds_read_b32 v31, v12', 'gx')]
    s.run(spread(qg, fill, 2, 26))
    KB = RING
    s('s_mov_b32 vcc_lo, 0\ns_mov_b32 vcc_hi, -1')
    for j in range(8): s(f'v_cvt_pk_bf16_f32 v{KB+j}, v{ACC+2*j}, v{ACC+2*j+1}')
    s(mf32(vr(P,16), vr(WF,4), vr(KB,4), '0'))
    s(mf32(vr(P,16), vr(WF+4,4), vr(KB+4,4), vr(P,16)))
    s.wait(dtag='gx')
    s(f'v_mul_f32 v31, s{sC}, v31\nv_exp_f32 v31, v31\nv_add_f32 v31, 1.0, v31\nv_rcp_f32 v31, v31\nv_sub_f32 v4, 1.0, v31\nv_mov_b32 v5, s{sTAG}\ns_mov_b32 exec_hi, 0')
    s.vm(f'buffer_store_dwordx2 v[4:5], v11, {sr(SWS,4)}, 0 offen sc1')
    s('s_mov_b32 exec_hi, -1')
    s.run(softmax_items(P, 64, PH, 16))
    s.stamp('smq')
    if 'pA1' in cfg: s(f's_setprio {cfg.get("prioA", 2)}')
    if not cfg.get('fsA_q', 1): s.run(fs)
    do('smq')
    wol = cfg.get('wo_at', 'Bs') == 'Bu'
    if not wol: lastw(s, [f'wo{i}' for i in range(4)])
    s('s_barrier')
    s.stamp('Bs')
    for ks in range(4): s.ds(f'ds_read_b128 {vr(RING+4*ks,4)}, v13 offset:{1024*ks}', f'kx{ks}')
    for ks in range(4):
        s.wait(dtag=f'kx{ks}')
        s(mf32(vr(P,16), vr(RING+4*ks,4), vr(PH+4*ks,4), vr(P,16) if ks else '0'))
    OP = RING + 16
    s(f'''v_add_f32 v6, {f2h(1e-6)}, v{P+7}
v_rcp_f32 v6, v6
v_mul_f32 v6, v6, v31''')
    for q in range(2):
        for r in range(8 * q, 8 * q + 7): s(f'v_mul_f32 v{P+r}, v{P+r}, v6')
        for j in range(4 * q, 4 * q + 4): s(f'v_cvt_pk_bf16_f32 v{OP+j}, v{P+2*j}, ' + (f'v{P+2*j+1}' if j & 3 != 3 else f's{sTH}'))
        s.vm(f'buffer_store_dwordx4 {vr(OP+4*q,4)}, v{vOS}, {sr(SWS,4)}, 0 offen offset:{512*q} sc1')
    s.stamp('ost')
    s(f's_setprio {cfg.get("prioA2", 0)}\ns_cmp_ge_u32 s{sJ}, 7\ns_cbranch_scc1 A_FIN')
    do('ost')
    wr = [] if wol else wo_reads()
    nw = cfg.get('woA_pre', 64)
    s.run(wr[:nw])
    g_issue(s, 'GA')
    if cfg.get('oissA', 0) == -1: o_issue(s, 'OA')
    s.run(wr[nw:])
    if cfg.get('oissA', 0) == 0: o_issue(s, 'OA')
    gather(s, 'GA', 1, 20, 29, lambda p: '0 offen', lambda p: [], tail, width=2)
    if wol: s.vdone = 0; lastw(s, [f'wo{i}' for i in range(4)])
    s('s_barrier')
    final_stage(s, 0, cfg, tail)
    s('A_FIN:')
    stamp_store(s)
    s('s_endpgm')
    s.run(tail)

def gen_B(s, cfg, plan):
    AD, AV, T1 = 64, 80, 96
    vWv, vWq, vWo = 15, 14, 112
    vDr, vVW, vGt = 22, 30, 116
    tail = []
    def items(pt):
        out = []
        for it in plan.get(pt, []):
            if it[0] == 'x': out.append(xdma(int(it[1])))
            elif it[0] == 'X':
                d = xdma(int(it[1]), -1); out.append(d[:3]); out.append(d[3:])
            elif it[0] == 'k': out.append(wdma('k', int(it[1]), vWs))
            elif it[0] == 'v': out.append(wdma('v', int(it[1]), vWv))
            elif it[0] == 'q': out.append(wdma('q', int(it[1]), vWq))
            elif it == 'osrc': out.append(wosrc(vWo))
            elif it[0] == 'o': out.append(wodma(int(it[1]), vWo))
            elif it == 'pf': out.append([('fn', lambda: prefetch(s, 'B'))])
            elif it == 'pw':
                out.append(['s_lshr_b32 s60, s2, 3', 's_lshl_b32 s60, s60, 2', f's_add_u32 s60, s60, s{sG}', f's_mul_i32 s60, s60, {25*128}', f'v_lshlrev_b32 v126, 7, v{vL}',
                            's_mov_b32 exec_hi, 0', 's_mov_b32 exec_lo, 0x1ffffff', ('vm', f'buffer_load_dword v126, v126, {sr(SWO,4)}, s60 offen', 'pw'), 's_mov_b64 exec, -1'])
            elif it == 'gate':
                out.append(['s_mov_b64 exec, 0x3fff', ('vm', f'buffer_load_dwordx4 {vr(vGt,4)}, v121, {sr(SGW,4)}, 0 offen', 'gate'), 's_mov_b64 exec, -1'])
            else: raise ValueError(it)
        return out
    def do(pt): s.run(items(pt))
    s('B_START:')
    s(f'''s_mov_b32 s{SGW+2}, 896
s_mov_b32 s{SGW+3}, 0x20000
s_mul_i32 s60, s{sG}, 14
v_add_u32 v4, s60, v{vL}
v_lshrrev_b32 v5, 3, v4
v_add_u32 v5, s{sRHO}, v5
v_subrev_u32 v8, 7, v5
v_cmp_lt_u32 vcc, 6, v5
v_cndmask_b32 v5, v5, v8, vcc
v_and_b32 v8, 7, v4
v_lshlrev_b32 v8, 4, v8
v_lshl_add_u32 v121, v5, 7, v8
s_mov_b32 s{sTAG+1}, {WS_F+0x1000}
s_waitcnt lgkmcnt(0)
s_load_dword s{sTAG}, {sr(SWS,2)}, s{sTAG+1}''')
    s.stamp('karg')
    do('pre0')
    s(f'''v_lshrrev_b32 v5, 1, v4
v_and_b32 v8, 1, v4
v_lshlrev_b32 v8, 9, v8
v_lshl_add_u32 v120, v5, 10, v8
v_add_u32 v120, {L_DF + 14*16}, v120''')
    prologue2(s)
    do('pre1')
    wsrc_setup(s)
    s(f'''v_add_u32 v{vWr2}, {L_WV2}, v{vWr}
v_add_u32 v{vWr}, {L_SP}, v{vWr}
v_add_u32 v{vWv}, 896, v{vWs}
s_sub_u32 s60, s{sHQ}, s{sH}
s_mul_i32 s60, s60, 56
s_sub_u32 s60, s60, 896
v_add_u32 v{vWq}, s60, v{vWs}
v_subrev_u32 v28, {2*458752}, v{vX}
v_subrev_u32 v29, {2*458752}, v{vX+1}
v_add_u32 v{vDr}, {L_DF}, v{v16}''')
    do('pre2')
    s(f'''v_and_b32 v4, 15, v{vL}
v_min_u32 v5, 13, v4
s_mul_i32 s60, s{sH}, 14
v_add_u32 v5, s60, v5
v_cmp_eq_u32 vcc, 15, v4
v_mov_b32 v8, 224
v_cndmask_b32 v5, v5, v8, vcc
v_cvt_f32_u32 v5, v5
v_mul_f32 v124, {f2h(1/448)}, v5
v_bfe_u32 v4, v{vL}, 4, 1
v_cvt_f32_u32 v4, v4
v_mul_f32 v4, 0x3e800000, v4
s_lshl_b32 s60, s{sG}, 4
v_lshl_add_u32 v5, v7, 3, s60
v_cvt_f32_u32 v5, v5
v_fma_f32 v125, v5, v124, v4
s_lshl_b32 s60, s{sG}, 10
v_add_u32 v126, s60, v{vDr}''')
    s('v_cos_f32 v123, v124')
    s('v_add_f32 v123, v123, v123')
    def dfrag(i, R=None):
        R, c = R or 240 + 4 * (i & 1), [4, 5, 8, 9]
        it = [f's_lshr_b32 s60, s{sCX+i}, 1', 'v_cvt_f32_u32 v4, s60', 'v_fma_f32 v4, v4, v124, v125', 'v_add_f32 v5, v4, v124',
              'v_cos_f32 v4, v4', 'v_cos_f32 v5, v5']
        for j in range(4):
            a, b, p, q = c[(2*j) & 3], c[(2*j+1) & 3], c[(2*j+2) & 3], c[(2*j+3) & 3]
            if j < 3: it += [f'v_fma_f32 v{p}, v123, v{b}, -v{a}', f'v_cvt_pk_bf16_f32 v{R+j}, v{a}, v{b}', f'v_fma_f32 v{q}, v123, v{p}, -v{b}']
            else: it += [f'v_cvt_pk_bf16_f32 v{R+j}, v{a}, v{b}']
        it += ['s_mov_b32 exec_lo, 0xffffbfff', 's_mov_b32 exec_hi, 0xffffbfff', ('ds', f'ds_write_b128 v126, {vr(R,4)} offset:{4096*i}', f'dfw{i}'), 's_mov_b64 exec, -1']
        return it
    ndf = cfg.get('ndf', 3)
    for k in range(4): s(f'v_add_u32 v{24+k}, 0x10000, v{vXr+k}')
    dfw = []
    for i in range(ndf):
        d = dfrag(i, 208 + 4 * i if cfg.get('dfdefer') else None)
        if cfg.get('dfdefer'): s.run(d[:-4]); dfw.append(d[-2])
        else: s.run(d)
    do('pre3')
    tw = ['v_lshrrev_b32 v4, 1, v6', 'v_cvt_f32_u32 v122, v4', f'v_mul_f32 v122, {f2h(1/32)}, v122', 'v_and_b32 v5, 1, v6',
          'v_cvt_f32_u32 v5, v5', 'v_mul_f32 v5, 0x3e800000, v5', 'v_cvt_f32_u32 v8, v7', 'v_mul_f32 v8, 4.0, v8', 'v_fma_f32 v127, v122, v8, v5',
          'v_and_b32 v4, 1, v4', 'v_mul_u32_u24 v2, 0x8000, v4', 'v_lshl_or_b32 v2, v2, 16, v2']
    for j in range(4):
        o = 2 * (j & 1) + 8 * (j >> 1)
        tw += [f'v_fmamk_f32 v8, v122, {f2h(o)}, v127', f'v_fmamk_f32 v9, v122, {f2h(o+1)}, v127',
               'v_cos_f32 v4, v8', 'v_cos_f32 v5, v9', 'v_sin_f32 v8, v8', 'v_sin_f32 v9, v9',
               f'v_cvt_pk_bf16_f32 v{T1+j}, v4, v5', f'v_cvt_pk_bf16_f32 v{T1+8+j}, v8, v9',
               f'v_xor_b32 v{T1+4+j}, v2, v{T1+j}', f'v_xor_b32 v{T1+12+j}, v2, v{T1+8+j}']
    tw += f'''v_bfe_u32 v4, v{vL}, 1, 2
v_xor_b32 v4, v4, v7
v_lshlrev_b32 v4, 4, v4
v_lshl_add_u32 v4, v6, 6, v4
s_lshl_b32 s60, s{sG}, 11
s_add_u32 s60, s60, {L_V}
v_add_u32 v{vVW}, s60, v4
v_xor_b32 v{vVW+1}, 32, v{vVW}
s_lshl_b32 s60, s{sHQ}, 2
s_add_u32 s60, s60, s{sG}
s_lshl_b32 s60, s60, 14
s_add_u32 s60, s60, {WS_P}
v_add_u32 v13, s60, v{v16}'''.split('\n')
    lf = {i: [] for i in range(7)}
    for i in range(ndf, 7): lf[i - ndf + cfg.get('dfo', 0)] += dfrag(i)
    tw0 = cfg.get('tw0', 7 - ndf)
    if tw0 < 0: s.run(tw)
    else:
        cuts = [0, 22, 32, 42, 52, len(tw)]
        seg = [tw[cuts[k]:cuts[k+1]] for k in range(5)]
        n = 7 - tw0
        for k in range(5): lf[tw0 + k * n // 5] += seg[k]
    def postB(i): return lf[i]
    def dread(sl): return [('ds', f'ds_read_b128 {vr(RING+4*(sl%8),4)}, v{vDr} offset:{1024*sl}', f'df{sl}')]
    s.stamp('dfd')
    if dfw: s.run(['s_mov_b32 exec_lo, 0xffffbfff', 's_mov_b32 exec_hi, 0xffffbfff'] + dfw + ['s_mov_b64 exec, -1'])
    s.wait(vtag='gate')
    s.stamp('gw')
    s('s_mov_b64 exec, 0x3fff')
    s.ds(f'ds_write_b128 v120, {vr(vGt,4)}')
    s('s_mov_b64 exec, -1')
    s.wait(dtag='all')
    s.run(TAGC)
    chunk_loop(s, cfg, dread, 'df', lambda sl: mf32(vr(AD,16), vr(XF+4*sl,4), vr(RING+4*(sl%8),4), vr(AD,16) if sl else '0'),
               items, lambda i: [f'x{i}', f'wk{i}'] + (['pf'] if i == 6 else []), postB)
    VB = 116
    s.stamp('kdone')
    do('kd')
    nv1 = cfg.get('nv1', 7)
    PK, QK, UA, UP = 240, 248, AD, 240
    lastw(s, [f'wv{i}' for i in range(nv1)]); s('s_barrier')
    s.stamp('Bv1')
    if 'pB0' in cfg: s(f's_setprio {cfg["pB0"]}')
    st1 = f'''v_lshlrev_b32 v4, 4, v7
s_lshl_b32 s60, s{sG}, 7
s_add_u32 s60, s60, {L_GX}
v_add_u32 v10, s60, v4
s_lshl_b32 s60, s{sG}, 2
s_add_u32 s60, s60, {L_UX}
v_add_u32 v11, s60, v{v16}'''.split('\n')
    st1.append(['s_mov_b32 exec_lo, 0x4000', 's_mov_b32 exec_hi, 0x4000'] + [('ds', f'ds_write_b128 v10, {vr(AD+4*q,4)} offset:{32*q}', 'gxw') for q in range(4)] +
               ['s_mov_b64 exec, -1'])
    for j in range(8): st1.append(f'v_cvt_pk_bf16_f32 v{PK+j}, v{AD+2*j}, v{AD+2*j+1}')
    for j in range(8): st1.append(f'v_xor_b32 v{QK+j}, 0x80000000, v{PK+j}')
    for j in range(8): st1.append(f'v_permlane16_swap_b32 v{PK+j}, v{QK+j}')
    st1.append([('wl', 'gxw'), mf32(vr(UA,16), vr(T1,4), vr(PK,4), '0'), mf32(vr(UA,16), vr(T1+4,4), vr(PK+4,4), vr(UA,16)),
                mf32(vr(UA,16), vr(T1+8,4), vr(QK,4), vr(UA,16)), mf32(vr(UA,16), vr(T1+12,4), vr(QK+4,4), vr(UA,16))])
    ua = uaddr(8, 44, 45) + [f's_lshl_b32 s60, s{sG}, 11', f's_add_u32 s60, s60, {L_UX}', f'v_add_u32 v12, s60, v{v16}']
    st2 = []
    for i in range(8): st2 += [f'v_cvt_pk_bf16_f32 v{UP+i}, v{UA+2*i}, v{UA+2*i+1}', ('ds', f'ds_write_b32 v11, v{UP+i} offset:{1024*i}', 'uxw')]
    urd = [('ds', f'ds_read_b128 {vr(UP+8,4)}, v12', 'u0'), ('ds', f'ds_read_b128 {vr(UP+12,4)}, v12 offset:1024', 'u1')]
    ust = [('wl', 'u1'), ('vm', f'buffer_store_dwordx4 {vr(UP+8,4)}, v8, {sr(SWS,4)}, s44 offen sc1'),
           ('vm', f'buffer_store_dwordx4 {vr(UP+12,4)}, v8, {sr(SWS,4)}, s45 offen sc1', 'ust'), ('st', 'ui')]
    assert nv1 < 7
    g1 = gemm_groups('v', 0, 4 * nv1, AV)
    g2 = gemm_groups('v', 4 * nv1, 28, AV)
    n1 = len(g1)
    s.run(spread(g1, items('v0') + st1 + items('v1') + ua + st2, cfg.get('vf0', 0), cfg.get('vf1', n1)))
    s.stamp('vm0'); do('vm'); s.stamp('vm1')
    lastw(s, [f'wv{i}' for i in range(7)]); s.wait(dtag='uxw'); s.stamp('vm2'); s('s_barrier'); s.stamp('Bv2')
    g2[0] = g2[0][:8] + urd + g2[0][8:]
    vg = g2
    fill = [ust] + items('v2') + ['s_movk_i32 s48, 4096', 's_movk_i32 s49, 8192', 's_movk_i32 s50, 12288']
    s.run(spread(vg, fill, cfg.get('vf2', 1), cfg.get('vf3', 10)))
    s(f'v_mov_b32 v{VB+6}, 0x3f80\nv_mov_b32 v{VB+7}, 0')
    FC = [f'v_cmp_ne_u32 vcc, s{sTAG}, v127']
    FL = [f'buffer_load_dword v127, v2, {sr(SWS,4)}, s{sTAG+1} offen sc1']
    tail += ['B_USPIN:', 's_movk_i32 s67, 2000', 'B_USP:'] + FL + ['s_sub_u32 s67, s67, 1',
             's_waitcnt vmcnt(0)', 's_cmp_eq_u32 s67, 0', 's_cbranch_scc1 B_UOK'] + FC + ['s_cbranch_vccnz B_USP', 's_branch B_UOK']
    for u in range(2):
        for j in range(4 * u, 4 * u + 4):
            if j == 6: s('s_mov_b32 exec_hi, 0')
            s(f'v_cvt_pk_bf16_f32 v{VB+j}, v{AV+2*j}, v{AV+2*j+1}')
        if u == 1: s('s_mov_b32 exec_hi, -1')
        s.ds(f'ds_write_b128 v{vVW+u}, {vr(VB+4*u,4)}')
    bp = cfg.get('bp', 0)
    s.stamp('vdone')
    if not bp: lastw(s, [f'wq{i}' for i in range(7)])
    if 'pB0' in cfg: s('s_setprio 0')
    s.wait(dtag='all'); s('s_barrier')
    s.stamp('Bkv')
    GB, SUM, UL = XF, 192, 112
    def psoff(p): return ['0', 's48', 's49', 's50'][p >> 2] + ' offen' + (f' offset:{1024*(p&3)}' if p & 3 else '')
    def pissue():
        s.stamp('gi')
        for p in range(16): s.vm(f'buffer_load_dwordx4 {vr(GB+4*p,4)}, v13, {sr(SWS,4)}, {psoff(p)} sc1', f'PG{p}')
    f2a = [f's_lshl_b32 s61, s{sRB}, 4', f's_add_u32 s61, s61, s{sH}', 's_lshl_b32 s61, s61, 2', f's_add_u32 s61, s61, s{sG}', 's_lshl_b32 s61, s61, 7', f's_add_u32 s61, s61, {WS_F2}',
           f'v_mov_b32 v4, s{sTAG}', 'v_mov_b32 v5, s61', ('wv', 'ust'), 's_mov_b64 exec, 1',
           ('vm', f'buffer_store_dword v4, v5, {sr(SWS,4)}, 0 offen sc1', 'f2'), 's_mov_b64 exec, -1', ('st', 'f2')]
    f2b = []
    SEL = 208
    sel = f'''v_bfe_u32 v4, v{vL}, 3, 2
v_and_b32 v5, 3, v{vL}
v_lshl_add_u32 v4, v4, 2, v5
v_bfe_u32 v5, v{vL}, 2, 1
v_lshrrev_b32 v6, 5, v{vL}
v_xor_b32 v5, v5, v6
v_lshl_add_u32 v4, v5, 4, v4
v_and_b32 v5, 1, v4
v_lshlrev_b32 v5, 4, v5
v_mov_b32 v6, 0x3f80
v_lshlrev_b32 v5, v5, v6
v_lshrrev_b32 v6, 1, v4
v_cmp_eq_u32 vcc, 0, v6
v_cndmask_b32 v{SEL}, 0, v5, vcc
v_cmp_eq_u32 vcc, 1, v6
v_cndmask_b32 v{SEL+1}, 0, v5, vcc
v_cmp_eq_u32 vcc, 2, v6
v_cndmask_b32 v{SEL+2}, 0, v5, vcc
v_cmp_eq_u32 vcc, 6, v4
v_cndmask_b32 v{SEL+3}, 0, v5, vcc'''.split('\n')
    f2w = cfg.get('f2w', 1)
    do('kv0')
    fsB = cfg.get('fsB', 1)
    if fsB == 0: s.run(final_setup(1))
    do('kv1')
    if bp:
        lastw(s, [f'wq{i}' for i in range(7)]); s('s_barrier')
        s.stamp('Bp')
    if f2w == 0: s.run(f2a + f2b)
    do('kv2')
    if fsB == 1: s.run(final_setup(1))
    do('kv')
    if f2w == 1: s.run(f2a + f2b)
    pissue()
    if 'pB1' in cfg: s(f's_setprio {cfg["pB1"]}')
    do('q')
    if fsB == 2: s.run(final_setup(1))
    s.run(sel)
    s(f'''s_lshl_b32 s60, s{sJ}, 6
v_add_u32 v4, s60, v{vL}
v_sub_u32 v5, 448, v4
s_movk_i32 s61, 224
v_cmp_le_u32 vcc, s61, v4
v_cndmask_b32 v4, v4, v5, vcc
s_sub_u32 s61, 32, s{sCL}
s_and_b32 s61, s61, 31
v_mov_b32 v5, s{sCL}
v_mov_b32 v6, s61
v_cndmask_b32 v5, v5, v6, vcc
v_mul_u32_u24 v6, 4682, v4
v_lshrrev_b32 v6, 16, v6
v_lshl_add_u32 v4, v6, 1, v4
v_lshlrev_b32 v4, 4, v4
v_min_u32 v4, 4080, v4
v_lshl_add_u32 v10, v5, 16, v4
v_min_u32 v6, 15, v6
v_bfe_u32 v5, v5, 2, 2
v_lshl_add_u32 v5, v6, 2, v5
v_and_b32 v4, 15, v{vL}
v_bfe_u32 v6, v{vL}, 3, 1
v_lshlrev_b32 v4, 4, v4
v_mad_u32_u24 v4, v6, 12, v4''')
    s.ds('ds_bpermute_b32 v2, v4, v5', 'fperm')
    s(f'''v_lshrrev_b32 v4, 4, v{vL}
s_lshl_b32 s{sTAG+1}, s{sG}, 15
s_add_u32 s{sTAG+1}, s{sTAG+1}, {WS_F2}
s_lshl_b32 s60, s{sG}, 14
s_add_u32 s60, s60, {WS_U}
v_add_u32 v10, s60, v10
s_lshl_b32 s61, s{sG}, 12
s_add_u32 s61, s61, {L_UT}
v_add_u32 v11, s61, v{v16}
s_lshl_b32 s60, s{sG}, 10
s_add_u32 s60, s60, {L_KX}
v_add_u32 v12, s60, v{v16}''')
    s.wait(dtag='fperm')
    s('v_lshl_add_u32 v2, v4, 6, v2\nv_lshlrev_b32 v2, 7, v2')
    if f2w == 2: s.run(f2a + f2b)
    def usoff(p): return ['0', 's48', 's49', 's50'][p]
    def uissue():
        for p in range(4): s.vm(f'buffer_load_dwordx4 {vr(UL+4*p,4)}, v10, {sr(SWS,4)}, {usoff(p)} offen sc1', f'UG{p}')
        g_issue(s, 'GB')
    fl2 = [('vm', FL[0], 'fl2')] if not cfg.get('nof2') else []
    f2p = cfg.get('fl2_at', 8)
    def work(p): return [mf32(vr(SUM,16), vr(SEL,4), vr(GB+4*p,4), vr(SUM,16) if p else '0')]
    if f2p < 0: s.run(fl2)
    gather(s, 'PG', 16, GB, 13, psoff, work, tail)
    if s.stamp_on: s('s_mov_b32 s100, s67')
    for j in range(4): s(f'v_cvt_pk_bf16_f32 v{SUM+8+j}, v{SUM+2*j}, v{SUM+2*j+1}')
    s.ds(f'ds_write_b128 v12, {vr(SUM+8,4)}')
    s.stamp('gok')
    if 'pB1' in cfg: s(f's_setprio 0')
    s.vdone = 0
    if f2w == 3: s.run(f2a + f2b)
    if f2p >= 0: s.run(fl2)
    do('gk')
    wol = cfg.get('wo_at', 'Bs') == 'Bu'
    if not wol: lastw(s, [f'wo{i}' for i in range(4)])
    s.wait(dtag='all'); s('s_barrier')
    s.stamp('Bs')
    s(f's_cmp_ge_u32 s{sJ}, 7\ns_cbranch_scc1 B_FIN')
    wr = [] if wol else wo_reads()
    nw = cfg.get('woB_pre', 0)
    s.run(wr[:nw])
    if fl2: s.wait(vtag='fl2'); s.run(FC + ['s_cbranch_vccnz B_USPIN'])
    s('B_UOK:')
    s.stamp('UG0')
    uissue()
    do('us')
    s.run(wr[nw:])
    if cfg.get('oissB', 0) == -1: o_issue(s, 'OB')
    for p in range(4):
        s.wait(vtag=f'UG{p}'); s.ds(f'ds_write_b128 v11, {vr(UL+4*p,4)} offset:{1024*p}')
    gather(s, 'GB', 1, 20, 29, lambda p: '0 offen', lambda p: [], tail, width=2)
    if s.stamp_on: s('s_mov_b32 s101, s67')
    s.stamp('uok')
    if cfg.get('oissB', 0) == 0: o_issue(s, 'OB')
    if wol: s.vdone = 0; lastw(s, [f'wo{i}' for i in range(4)])
    s.wait(dtag='all')
    s('s_barrier')
    final_stage(s, 1, cfg, tail)
    s(f'''s_lshl_b32 s60, s2, 3
s_add_u32 s60, s60, s{sW}
s_cmp_lg_u32 s60, 4
s_cbranch_scc1 B_FIN
v_mov_b32 v4, s{sTAG}
v_mov_b32 v5, {WS_F+0x1000}
s_mov_b64 exec, 1
buffer_store_dword v4, v5, {sr(SWS,4)}, 0 offen sc1''')
    s('B_FIN:')
    stamp_store(s)
    s('K_END:\ns_endpgm')
    s.run(tail)

def build(cfg):
    plan = {r: dict(DEF_PLAN[r]) for r in 'AB'}
    for r in 'AB': plan[r].update(cfg.get('plan', {}).get(r, {}))
    a = Sched(); a.stamp_on = cfg.get('stamps', False); a.stamp_base = STB
    EARLY = [f'W{i}' for i in range(7)] + [f'B{i}' for i in range(1, 7)]
    LATE = ['Bkv', 'pub', 'Bq', 'smq', 'Bs', 'ost', 'Bu', 'OA0', 'OB0', 'og', 'end', 'dbgok', 'gi', 'PG0', 'gok', 'uok', 'drain', 'GA0', 'GB0', 'UG0', 'Y']
    if cfg.get('mid'):
        cfg['skipA'] = EARLY[:5] + ['B1', 'B2', 'B3', 'B4', 'B5', 'Bs', 'ost', 'Bu', 'OA0', 'og', 'end', 'GA0', 'Y', 'drain', 'fok', 'karg']
        cfg['skipB'] = EARLY[:5] + ['B0', 'B1', 'B2', 'B3', 'B4', 'B5', 'Bs', 'Bu', 'OB0', 'og', 'end', 'GB0', 'UG0', 'Y', 'drain', 'uok']
    LATE += ['smk', 'vdone', 'Bv2', 'Bp', 'f2', 'fok', 'vm0', 'vm1', 'vm2', 'ui']
    if cfg.get('mid'):
        cfg['skipB'] += ['dfd', 'gw', 'W5', 'W6', 'B6', 'karg']; cfg['skipA'] += ['W5', 'W6']
    if cfg.get('early'):
        cfg['skipA'] = LATE + ['B1', 'B3', 'B5', 'B4']; cfg['skipB'] = LATE + ['B1', 'B3', 'B5', 'B4', 'B2', 'B6']
    a.stamp_skip = cfg.get('skipA', EARLY + ['GA0', 'Y', 'drain', 'smk', 'Bv2', 'karg', 'vm0', 'vm2'])
    prologue(a)
    b = Sched(); b.a = a.a; b.stamp_on = a.stamp_on; b.stamp_base = STB; b.stamps = list(a.stamps)
    b.stamp_skip = cfg.get('skipB', EARLY + ['B0', 'Bs', 'Y', 'end', 'GB0', 'kdone', 'vdone', 'Bv2', 'dfd', 'gw', 'vm0', 'vm1', 'vm2', 'ui'])
    gen_A(a, cfg, plan['A'])
    gen_B(b, cfg, plan['B'])
    assert len(a.stamps) <= 15 and len(b.stamps) <= 15, (a.stamps, b.stamps)
    txt = build_file([dict(name=KN, asm=a.a, grid=256, block=512, lds=163840, vgpr=256, agpr=0)])
    return txt, a, b

if __name__ == '__main__':
    cfg = json.loads(sys.argv[2]) if len(sys.argv) > 2 else {}
    txt, a, b = build(cfg)
    open(sys.argv[1], 'w').write(txt)
    print('instrs', a.a.count, 'nops', a.a.nops)
    print('stamps', a.stamps, b.stamps)
```

```python
import sys, json, struct
sys.path.insert(0, 'work')
from gen_lib import *
BASE = 'gated_mix__spectral_fnet__linear_kernel_hedgehog__prompt'
KN = BASE + '_kernel'
WS_O, WS_U, WS_P, WS_G, WS_ST = 0, 0x200000, 0x400000, 0x510000, 0x600000
WS_N = 0x700000
WS_F2 = 0x520000
WS_F = 0x500000
sTAG, sTH = 36, 30
TAGC = [f's_lshr_b32 s{sTAG}, s{sTAG}, 16', f's_add_u32 s{sTAG}, s{sTAG}, 1', f's_and_b32 s{sTAG}, s{sTAG}, 0x9fff', f's_or_b32 s{sTAG}, s{sTAG}, 0x2000',
        f's_lshl_b32 s{sTH}, s{sTAG}, 16', f's_or_b32 s{sTAG}, s{sTAG}, s{sTH}']
LOG2E = 0x3fb8aa3b
def f2h(x): return '0x%08x' % struct.unpack('<I', struct.pack('<f', x))[0]
def vr(b, n): return 'v[%d:%d]' % (b, b + n - 1)
def sr(b, n): return 's[%d:%d]' % (b, b + n - 1)
def mf32(d, a, b, c): return 'v_mfma_f32_32x32x16_bf16 %s, %s, %s, %s' % (d, a, b, c)
def mf16(d, a, b, c): return 'v_mfma_f32_16x16x32_bf16 %s, %s, %s, %s' % (d, a, b, c)

sW, sRB, sH, sHQ, sBETA, sG, sCL, sJ, sRHO = 3, 4, 5, 6, 7, 8, 9, 10, 11
SX, SWQ, SPHI, SWO, SGW, SWS, SDBG, SOUT = 12, 16, 20, 24, 28, 32, 36, 40
sCX, sCW = 44, 51
sGA = 44
sXM, sWM = 58, 59
T0 = 60
sC, sNC = 68, 69
STB = 70
L_WK, L_DF, L_PHI, L_SP = 81920, 110592, 139264, 143360
L_PH, L_V, L_WV2, L_WQ, L_WO = 0, 16384, 32768, 49152, 81920
L_UX, L_GX, L_KX = 40960, 77824, 152064
L_UT, L_RX = 32768, 0
vL, v16 = 1, 3
vWs, vX, vPhi = 10, 11, 13
vXr, vWr, vWr2, vPr = 16, 20, 21, 22
RING, XF = 32, 128

def stamp_store(s):
    if not s.stamp_on: return
    s('s_mov_b64 exec, -1\ns_waitcnt vmcnt(0)')
    s.stamp('drain')
    s('s_waitcnt lgkmcnt(0)')
    s(f's_lshl_b32 s60, s2, 3\ns_add_u32 s60, s60, s{sW}\ns_lshl_b32 s60, s60, 7\ns_add_u32 s60, s60, {WS_ST}\nv_mov_b32 v4, s60\ns_mov_b64 exec, 1')
    s(f'v_mov_b32 v5, s100\nbuffer_store_dword v5, v4, {sr(SWS,4)}, 0 offen offset:64')
    s(f'v_mov_b32 v5, s67\nbuffer_store_dword v5, v4, {sr(SWS,4)}, 0 offen offset:68')
    s(f'v_mov_b32 v5, s101\nbuffer_store_dword v5, v4, {sr(SWS,4)}, 0 offen offset:72')
    for i in range(len(s.stamps)):
        s(f'v_mov_b32 v5, s{s.stamp_base+2*i}\nbuffer_store_dword v5, v4, {sr(SWS,4)}, 0 offen offset:{4*i}')

def softmax_items(P, EM, PH, T):
    it = []
    mx, mn = T, T + 1
    it.append(f'v_cndmask_b32 v{P+12}, v{P+12}, v{P+14}, vcc')
    it.append(f'v_cndmask_b32 v{P+13}, v{P+13}, v{P+15}, vcc')
    it.append(f'v_max3_f32 v{mx}, v{P}, v{P+1}, v{P+2}')
    it.append(f'v_max3_f32 v{mn}, -v{P}, -v{P+1}, -v{P+2}')
    for k in range(3, 13, 2):
        it.append(f'v_max3_f32 v{mx}, v{mx}, v{P+k}, v{P+k+1}')
        it.append(f'v_max3_f32 v{mn}, v{mn}, -v{P+k}, -v{P+k+1}')
    it.append(f'v_max_f32 v{mx}, v{mx}, v{P+13}')
    it.append(f'v_max_f32 v{mn}, v{mn}, -v{P+13}')
    it.append(f'v_permlane32_swap_b32 v{mx}, v{mn}')
    it.append(f'v_max_f32 v{mx}, v{mx}, v{mn}')
    it.append(f'v_mul_f32 v{mx}, s{sNC}, v{mx}')
    it.append(f'v_mov_b32 v{mn}, v{mx}')
    it.append(f'v_permlane32_swap_b32 v{mx}, v{mn}')
    sp = [T + 2, T + 3]; sm = [T + 4, T + 5]
    for r in range(14):
        it.append(f'v_fma_f32 v{EM+r}, v{P+r}, s{sNC}, v{mn}')
        it.append(f'v_fma_f32 v{P+r}, v{P+r}, s{sC}, v{mx}')
        it.append(f'v_exp_f32 v{EM+r}, v{EM+r}')
        it.append(f'v_exp_f32 v{P+r}, v{P+r}')
        q = r - 1
        if q == 2:
            it.append(f'v_add_f32 v{sm[0]}, v{EM}, v{EM+2}'); it.append(f'v_add_f32 v{sp[0]}, v{P}, v{P+2}')
        elif q == 3:
            it.append(f'v_add_f32 v{sm[1]}, v{EM+1}, v{EM+3}'); it.append(f'v_add_f32 v{sp[1]}, v{P+1}, v{P+3}')
        elif q > 3:
            it.append(f'v_add_f32 v{sm[q&1]}, v{sm[q&1]}, v{EM+q}'); it.append(f'v_add_f32 v{sp[q&1]}, v{sp[q&1]}, v{P+q}')
    it.append(f'v_add_f32 v{sm[0]}, v{sm[0]}, v{sm[1]}'); it.append(f'v_add_f32 v{sp[0]}, v{sp[0]}, v{sp[1]}')
    it.append(f'v_add_f32 v{sm[0]}, v{sm[0]}, v{EM+13}'); it.append(f'v_add_f32 v{sp[0]}, v{sp[0]}, v{P+13}')
    it.append(f'v_permlane32_swap_b32 v{sp[0]}, v{sm[0]}')
    it.append(f'v_add_f32 v{sp[0]}, v{sp[0]}, v{sm[0]}')
    it.append(f'v_rcp_f32 v{sp[0]}, v{sp[0]}')
    it.append(f'v_mov_b32 v{sm[0]}, v{sp[0]}')
    it.append(f'v_permlane32_swap_b32 v{sp[0]}, v{sm[0]}')
    for ks in range(4):
        b = (P if ks < 2 else EM) + 7 * (ks & 1); sc = sp[0] if ks < 2 else sm[0]
        for t in range(4):
            it.append(f'v_mul_f32 v{b+2*t}, v{b+2*t}, v{sc}')
            if t < 3: it.append(f'v_mul_f32 v{b+2*t+1}, v{b+2*t+1}, v{sc}')
            it.append(f'v_cvt_pk_bf16_f32 v{PH+4*ks+t}, v{b+2*t}, ' + (f'v{b+2*t+1}' if t < 3 else '0'))
    return it

def xdma(i, both=0):
    sl = i % 5
    it = [f's_add_u32 m0, s{sXM}, {16384*sl}',
          ('vm', f'buffer_load_dwordx4 v{vX}, {sr(SX,4)}, s{sCX+i} offen lds'),
          ('vm', f'buffer_load_dwordx4 v{vX+1}, {sr(SX,4)}, s{sCX+i} offen offset:1024 lds', f'x{i}')]
    if both:
        it += [f's_add_u32 m0, s{sXM}, {16384*sl+2048*both}',
               ('vm', f'buffer_load_dwordx4 v28, {sr(SX,4)}, s{sCX+i} offen lds'),
               ('vm', f'buffer_load_dwordx4 v29, {sr(SX,4)}, s{sCX+i} offen offset:1024 lds', f'x{i}')]
    return it
def wdst(kind, i):
    if kind == 'k': return L_WK + 4096 * i
    if kind == 'v': return L_SP + 4096 * i if i < 5 else L_WV2 + 4096 * (i - 5)
    return L_WQ + 4096 * i
def wdma(kind, i, vsrc):
    return [f's_add_u32 m0, s{sWM}, {wdst(kind, i)}',
            ('vm', f'buffer_load_dwordx4 v{vsrc}, {sr(SWQ,4)}, s{sCW+i} offen lds', f'w{kind}{i}')]

DEF_PLAN = {
    'A': {'pre0': ['k0', 'x0', 'k1', 'x1'], 'pre1': ['phi', 'k2', 'x2'], 'b0': ['k3', 'x3', 'clr']},
    'B': {'pre0': ['x0', 'gate', 'x1'], 'pre1': ['x2'], 'b0': ['x3', 'k4', 'X4'], 'b1': ['k5', 'X5'], 'b2': ['k6', 'X6'], 'b3': ['v0', 'v1', 'v2', 'v3'],
          'b4': ['v4', 'v5', 'v6'], 'b5': ['q0', 'q1', 'q2'], 'b6': ['q3', 'q4', 'q5', 'q6'], 'v2': ['dbg'], 'kv': ['o0', 'o1', 'o2', 'o3']},
}

def chunk_sgprs(s, lo, hi):
    for i in range(lo, hi):
        if i: s('s_add_u32 s62, s62, 1\ns_cmp_eq_u32 s62, 7\ns_cselect_b32 s62, 0, s62')
        s(f's_lshl_b32 s{sCX+i}, s62, 7\ns_mul_i32 s{sCW+i}, s62, {64*2688}')

def prologue(s):
    s('s_cmp_ge_u32 s2, 256\ns_cbranch_scc1 K_END')
    s.stamp('start')
    s(f'''s_load_dwordx2 {sr(SWQ,2)}, s[0:1], 48
s_load_dwordx2 {sr(SX,2)}, s[0:1], 0
s_load_dwordx2 {sr(SPHI,2)}, s[0:1], 56
s_load_dwordx2 {sr(SGW,2)}, s[0:1], 72
s_load_dwordx2 {sr(SWS,2)}, s[0:1], 96
s_load_dwordx2 {sr(SWO,2)}, s[0:1], 64
s_load_dwordx2 {sr(SOUT,2)}, s[0:1], 80
v_lshrrev_b32 v4, 6, v0
v_and_b32 v{vL}, 63, v0
s_and_b32 s60, s2, 7
v_readfirstlane_b32 s{sW}, v4
s_lshr_b32 s61, s2, 3
s_and_b32 s62, s61, 3
s_lshr_b32 s{sJ}, s61, 2
s_lshl_b32 s{sCL}, s60, 2
s_add_u32 s{sCL}, s{sCL}, s62
s_and_b32 s{sRB}, s{sCL}, 15
s_lshr_b32 s{sH}, s60, 2
s_lshl_b32 s{sH}, s{sH}, 3
s_add_u32 s{sH}, s{sH}, s{sJ}
s_and_b32 s{sG}, s{sW}, 3
s_lshl_b32 s{sBETA}, s{sRB}, 2
s_add_u32 s{sBETA}, s{sBETA}, s{sG}
s_lshl_b32 s62, s{sRB}, 1
s_add_u32 s62, s62, s{sH}
s_mul_i32 s63, s62, 37
s_lshr_b32 s63, s63, 8
s_mul_i32 s63, s63, 7
s_sub_u32 s{sRHO}, s62, s63
s_mov_b32 s62, s{sRHO}''')
    chunk_sgprs(s, 0, 2)
    for r, n in ((SX, 2048*896), (SWQ, 448*2688)):
        s(f's_mov_b32 s{r+2}, {n}\ns_mov_b32 s{r+3}, 0x20000')
    s(f'''v_lshrrev_b32 v6, 3, v{vL}
v_and_b32 v7, 7, v{vL}
v_lshrrev_b32 v8, 4, v{vL}
v_xor_b32 v7, v7, v8
v_lshlrev_b32 v7, 4, v7
s_mov_b32 s63, 57344
v_mad_u32_u24 v{vX}, v6, s63, v7
s_lshr_b32 s64, s{sW}, 2
s_lshl_b32 s{sXM}, s{sG}, 12
s_lshl_b32 s60, s64, 11
s_add_u32 s{sXM}, s{sXM}, s60
s_mul_i32 s60, s{sBETA}, 896
s_mul_i32 s61, s64, {2*458752}
s_add_u32 s60, s60, s61
v_add_u32 v{vX}, s60, v{vX}
v_xor_b32 v{vX+1}, 64, v{vX}
v_add_u32 v{vX+1}, {458752-1024}, v{vX+1}
s_cmp_ge_u32 s{sW}, 4
s_cbranch_scc1 B_START''')

def wsrc_setup(s):
    s(f'''v_lshrrev_b32 v4, 2, v{vL}
v_and_b32 v5, 3, v{vL}
v_lshlrev_b32 v5, 4, v5
v_min_u32 v5, 40, v5
s_movk_i32 s63, 2688
v_mad_u32_u24 v{vWs}, v4, s63, v5
s_mul_i32 s60, s{sG}, 43008
s_mul_i32 s61, s{sH}, 56
s_add_u32 s60, s60, s61
s_add_u32 s60, s60, 896
v_add_u32 v{vWs}, s60, v{vWs}
s_lshl_b32 s{sWM}, s{sG}, 10''')

def prologue2(s):
    chunk_sgprs(s, 2, 7)
    for r, n in ((SPHI, 25088), (SWO, 401408), (SWS, WS_N), (SOUT, 2048*896)):
        s(f's_mov_b32 s{r+2}, {n}\ns_mov_b32 s{r+3}, 0x20000')
    s(f'''s_xor_b32 s{sHQ}, s{sH}, 1
v_lshlrev_b32 v{v16}, 4, v{vL}
v_and_b32 v6, 31, v{vL}
v_lshrrev_b32 v7, 5, v{vL}
v_bfe_u32 v8, v{vL}, 1, 3
v_xor_b32 v8, v8, v7
v_lshlrev_b32 v8, 4, v8
v_lshl_add_u32 v{vXr}, v6, 7, v8
s_lshl_b32 s60, s{sG}, 12
v_add_u32 v{vXr}, s60, v{vXr}
v_xor_b32 v{vXr+1}, 32, v{vXr}
v_xor_b32 v{vXr+2}, 64, v{vXr}
v_xor_b32 v{vXr+3}, 0x60, v{vXr}
v_bfe_u32 v8, v{vL}, 4, 1
v_and_b32 v9, 3, v{vL}
v_lshl_add_u32 v8, v8, 2, v9
v_cmp_lt_u32 vcc, 5, v8
v_cndmask_b32 v8, v8, 7, vcc
v_lshlrev_b32 v8, 3, v8
v_bfe_u32 v9, v{vL}, 2, 2
v_lshl_add_u32 v8, v9, 6, v8
v_lshl_add_u32 v{vWr}, v7, 9, v8
s_mov_b32 s{sC}, {LOG2E}
s_mov_b32 s{sNC}, {LOG2E | 0x80000000}''')

def prefetch(s, role):
    if role == 'A':
        s(f'''s_lshr_b32 s61, s2, 3
v_lshrrev_b32 v30, 4, v{vL}
s_lshl_b32 s60, s{sJ}, 2
v_add_u32 v30, s60, v30
v_lshlrev_b32 v30, 6, v30
v_bfe_u32 v31, v{vL}, 2, 2
v_add_u32 v30, v30, v31
s_lshl_b32 s60, s{sRB}, 2
v_add_u32 v30, s60, v30
s_movk_i32 s60, 896
v_mul_u32_u24 v30, s60, v30
v_and_b32 v31, 3, v{vL}
v_lshl_add_u32 v30, v31, 7, v30
s_and_b32 s60, s{sW}, 1
s_lshl_b32 s60, s60, 9
s_mul_i32 s61, s61, 12544
s_lshl_b32 s63, s60, 4
s_add_u32 s61, s61, s63
v_lshlrev_b32 v31, 7, v{vL}
s_cmp_ge_u32 s{sW}, 2
s_cbranch_scc1 PFA_O
buffer_load_dword v96, v30, {sr(SX,4)}, s60 offen
s_branch PFA_E
PFA_O:
buffer_load_dword v96, v31, {sr(SWO,4)}, s61 offen
PFA_E:''')
    else:
        s(f'''s_lshr_b32 s61, s2, 3
s_mul_i32 s61, s61, {14*2688}
s_lshr_b32 s60, s{sH}, 3
s_mul_i32 s60, s60, 384
s_add_u32 s61, s61, s60
s_mul_i32 s60, s{sG}, 896
s_add_u32 s61, s61, s60
v_lshrrev_b32 v30, 2, v{vL}
s_movk_i32 s60, 2688
v_mul_u32_u24 v30, s60, v30
v_and_b32 v31, 3, v{vL}
v_lshl_add_u32 v30, v31, 7, v30
buffer_load_dword v250, v30, {sr(SWQ,4)}, s61 offen''')
    s.nvm += 1; s.vt['pf'] = s.nvm

def uaddr(va, s0, s1):
    return f'''v_and_b32 v9, 15, v{vL}
v_lshlrev_b32 v{va}, 4, v9
v_bfe_u32 v9, v{vL}, 4, 1
v_lshl_add_u32 v{va}, v9, 20, v{va}
v_lshl_add_u32 v{va}, v7, 17, v{va}
s_lshl_b32 s{s0}, s{sG}, 18
s_lshl_b32 s{s1}, s{sRB}, 12
s_add_u32 s{s0}, s{s0}, s{s1}
s_lshl_b32 s{s1}, s{sH}, 8
s_add_u32 s{s0}, s{s0}, s{s1}
s_add_u32 s{s0}, s{s0}, {WS_U}
s_add_u32 s{s1}, s{s0}, 65536'''.split('\n')

def xreads(i):
    sl = i % 5
    return [('ds', f'ds_read_b128 {vr(XF+16*i+4*k,4)}, v{vXr+k} offset:{16384*sl}' if sl < 4 else f'ds_read_b128 {vr(XF+16*i+4*k,4)}, v{24+k}', f'xf{4*i+k}')
            for k in range(4)]

def chunk_loop(s, cfg, rd, fk, mf, items, pre, post):
    for i in range(7):
        t = [x for x in pre(i) if x in s.vt]
        lazy = cfg.get('lazy', 0)
        dt = ('all' if i else None) if not lazy else (f'dfw{i}' if f'dfw{i}' in s.dt else None)
        s.wait(vtag=max(t, key=lambda x: s.vt[x]) if t else None, dtag=dt)
        s.stamp(f'W{i}')
        s.run(items(f'w{i}'))
        s('s_barrier')
        s.stamp(f'B{i}')
        xr = xreads(i)
        reads = [[xr[k]] + rd(4 * i + k) for k in range(4)]
        dm = items(f'b{i}')
        if i == 0: s.run(reads); s.run(post(i)); s.run(dm)
        else:
            mf_ = mf
            if lazy: mf = lambda sl: [('wl', f'{fk}{sl}'), mf_(sl)]
            seq = [[mf(4 * (i - 1))], reads[0], reads[1], [mf(4 * (i - 1) + 1)], reads[2], reads[3], [mf(4 * (i - 1) + 2)], post(i)]
            if cfg.get('il', 0):
                one = []; cur = []
                for d in dm:
                    for x in d:
                        cur.append(x)
                        if isinstance(x, tuple) and x[0] == 'vm': one.append(cur); cur = []
                assert not cur
                po = post(i); n = len(one); m = len(po)
                seq = []
                rs = [reads[0] + reads[1], reads[2] + reads[3], [], []] if cfg['il'] == 1 else reads
                for k in range(4):
                    pf = cfg.get('pofirst', 3)
                    if pf == 3: seq += [[mf(4 * (i - 1) + k)], rs[k], one[k * n // 4:(k + 1) * n // 4], po if k == 3 else []]
                    else: seq += [[mf(4 * (i - 1) + k)], rs[k], po if k == pf else [], one[k * n // 4:(k + 1) * n // 4]]
            elif cfg.get('dma_mid', 1): seq += [dm[:len(dm)//2], [mf(4 * (i - 1) + 3)], dm[len(dm)//2:]]
            else: seq += [[mf(4 * (i - 1) + 3)], dm]
            s.run(seq)
            mf = mf_
    for k in range(4):
        s.wait(dtag=f'{fk}{24+k}')
        s(mf(24 + k))

def wread(kind, sl):
    r = RING + 4 * (sl % 8)
    if kind == 'k': b, o = vWr, 1024 * sl
    elif kind == 'q': b, o = vWr2, 1024 * sl
    else: b, o = (vWr, 1024 * sl) if sl < 20 else (vWr2, 1024 * (sl - 20))
    return [('ds', f'ds_read_b64_tr_b16 {vr(r,2)}, v{b} offset:{o}'), ('ds', f'ds_read_b64_tr_b16 {vr(r+2,2)}, v{b} offset:{o+256}', f'{kind}f{sl}')]

def gemm_groups(kind, lo, hi, acc, pre=4):
    g = []; head = []
    for sl in range(lo, min(lo + pre, hi)): head += wread(kind, sl)
    for sl in range(lo, hi):
        it = []
        if sl == lo: it += head
        it.append(('wl', f'{kind}f{sl}'))
        it.append(mf32(vr(acc,16), vr(RING+4*(sl%8),4), vr(XF+4*sl,4), vr(acc,16) if sl else '0'))
        if sl + pre < hi: it += wread(kind, sl + pre)
        g.append(it)
    return g

SELRT = [0]
def gather(s, nm, n, reg, vaddr, soff, work, tail, cnt=400, width=4, ldf=None, mask=False):
    op = {4: 'buffer_load_dwordx4', 2: 'buffer_load_dwordx2'}[width]
    def rg(p): return vr(reg + width * p, width)
    def ld(p):
        if ldf: return ldf(p)
        return [f'{op} {rg(p)}, v{vaddr}, {sr(SWS,4)}, {soff(p)} sc1']
    def chk(p):
        if width == 4:
            return [f'v_cmp_ne_u32_sdwa vcc, v{reg+4*p+3}, s{sTAG} src0_sel:WORD_1 src1_sel:WORD_1'] + \
                   ([f'v_and_b32 v{reg+4*p+3}, 0xffff, v{reg+4*p+3}'] if mask else []) + [f's_cbranch_vccnz {nm}_RT{p}']
        return [f'v_cmp_ne_u32 vcc, s{sTAG}, v{reg+2*p+1}', f's_cbranch_vccnz {nm}_RT{p}']
    s(f's_movk_i32 s67, {cnt}')
    if SELRT[0]:
        def cmp(p): return chk(p)[0]
        for p in range(n):
            s(f'{nm}_CK{p}:')
            s.vdone = 0
            s.wait(vtag=f'{nm}{p}')
            s.run(chk(p)); s(f'{nm}_OK{p}:')
            if p == 0: s.stamp(nm + '0')
            s.run(work(p))
            tail += [f'{nm}_RT{p}:', f's_movk_i32 s68, {p}', 's_sub_u32 s67, s67, 1', 's_cmp_eq_u32 s67, 0', f's_cbranch_scc1 {nm}_GU{p}',
                     's_waitcnt vmcnt(0)', f's_branch {nm}_CH{p}', f'{nm}_GU{p}:', 's_movk_i32 s67, 1', 's_waitcnt vmcnt(0)', f's_branch {nm}_OK{p}']
        for q in range(n):
            tail += [('raw', x) for x in [f'{nm}_CH{q}:', cmp(q), 's_nop 1', f's_cbranch_vccz {nm}_CH{q+1}'] + ld(q)]
        tail += [('raw', f'{nm}_CH{n}:'), 's_waitcnt vmcnt(0)']
        for p in range(n - 1): tail += [f's_cmp_eq_u32 s68, {p}', f's_cbranch_scc1 {nm}_CK{p}']
        tail += [f's_branch {nm}_CK{n-1}']
        return
    extra = s.nvm - s.vt[f'{nm}{n-1}']
    two = extra > 0
    R = 'R' if two else ''
    for p in range(n):
        s(f'{nm}_CK{p}:')
        s.vdone = 0
        s.wait(vtag=f'{nm}{p}')
        s.run(chk(p)); s(f'{nm}_OK{p}:')
        if p == 0: s.stamp(nm + '0')
        w = work(p)
        s.run(w)
        t = [f'{nm}_RT{p}:', 's_sub_u32 s67, s67, 1', 's_cmp_eq_u32 s67, 0', f's_cbranch_scc1 {nm}_GU{p}', 's_waitcnt vmcnt(0)']
        for q in range(p, n): t += ld(q)
        t += [f's_branch {nm}_{R}CK{p}', f'{nm}_GU{p}:', 's_movk_i32 s67, 1', 's_waitcnt vmcnt(0)', f's_branch {nm}_{R}OK{p}']
        tail += t
    if two:
        s(f'{nm}_JOIN:')
        for p in range(n):
            w = work(p)
            assert all(isinstance(x, str) for x in w)
            tail += [f'{nm}_RCK{p}:', f's_waitcnt vmcnt({sum(len(ld(q)) for q in range(p + 1, n))})'] + chk(p) + [f'{nm}_ROK{p}:'] + w
        tail.append(f's_branch {nm}_JOIN')

def final_setup(kh):
    T2 = 96
    it = f'''s_lshr_b32 s60, s{sG}, 1
s_lshl_b32 s60, s60, 5
s_add_u32 s60, s60, s{sCL}
s_and_b32 s61, s{sG}, 1
s_lshl_b32 s62, s61, 10
s_add_u32 s63, s62, s60
v_and_b32 v4, 15, v{vL}
v_lshrrev_b32 v5, 4, v{vL}
v_lshl_add_u32 v6, v4, 6, s63
v_cvt_f32_u32 v7, v6
v_mul_f32 v7, {f2h(1/2048)}, v7
v_lshl_add_u32 v8, v5, 2, {32*kh}
v_cvt_f32_u32 v8, v8
v_mul_f32 v8, v8, v7
s_cmp_ge_u32 s{sJ}, 4
s_cselect_b32 s64, 0x80000000, 0
s_cmp_ge_u32 s{sJ}, 3
s_cselect_b32 s65, 0x80000000, 0
s_movk_i32 s66, 896
v_mul_u32_u24 v15, s66, v6
v_and_b32 v6, 1, v5
v_lshl_add_u32 v15, v6, 5, v15
v_lshrrev_b32 v6, 1, v5
v_lshl_add_u32 v15, v6, 4, v15
s_lshl_b32 s66, s{sJ}, 7
s_add_u32 s66, s66, {64*kh}
v_add_u32 v15, s66, v15
s_lshl_b32 s60, s60, 1
s_add_u32 s60, s60, s61
s_lshl_b32 s66, s60, 7
s_add_u32 s66, s66, {WS_G}
v_lshl_add_u32 v29, v4, 3, s66
s_lshl_b32 s60, s60, 14
s_add_u32 s60, s60, {WS_O+8192*kh}
v_add_u32 v14, s60, v{v16}
v_lshlrev_b32 v23, 4, v4
v_lshl_add_u32 v23, v5, 10, v23
v_add_u32 v23, {L_UT+8192*kh}, v23'''.split('\n')
    for u in range(2):
        for jj in range(4):
            r = T2 + 4 * u + jj
            it += [f'v_fmamk_f32 v9, v7, {f2h(16*u+jj)}, v8' if (u or jj) else 'v_mov_b32 v9, v8', 'v_cos_f32 v6, v9', 'v_sin_f32 v9, v9',
                   f'v_cvt_pk_bf16_f32 v{r}, v6, v9', f'v_xor_b32 v{r+8}, s65, v{r}', f'v_xor_b32 v{r}, s64, v{r}']
    it += f'''v_bfe_u32 v6, v{vL}, 2, 2
v_mad_u32_u24 v6, v5, 7, v6
v_bfe_u32 v7, v{vL}, 3, 2
v_bfe_u32 v8, v{vL}, 1, 1
v_lshl_or_b32 v8, v7, 1, v8
v_lshlrev_b32 v8, 4, v8
v_lshl_add_u32 v8, v6, 7, v8
v_and_b32 v7, 1, v{vL}
v_lshl_add_u32 v8, v7, 3, v8
v_add_u32 v24, {L_WO + 128*224*kh}, v8
v_xor_b32 v25, 32, v24
v_xor_b32 v26, 64, v24
v_xor_b32 v27, 0x60, v24
s_lshl_b32 s60, s{sW}, 11
v_add_u32 v28, s60, v{v16}
v_xor_b32 v30, 0x2000, v28'''.split('\n')
    return it

def wo_reads():
    it = []
    for j in range(8):
        for ct in range(4):
            r = XF + 16 * j + 4 * ct
            for u in range(2):
                it.append(('ds', f'ds_read_b64_tr_b16 {vr(r+2*u,2)}, v{24 + ct} offset:{128*(28*j+4*u)}', f'wo{j}_{ct}'))
    return it

OG = 32
def osoff(p): return ['0', 's60'][p >> 2] + ' offen' + (f' offset:{1024*(p&3)}' if p & 3 else '')
def old(p): return [f'buffer_load_dwordx4 {vr(OG+4*p,4)}, v14, {sr(SWS,4)}, {osoff(p)} sc1']
def o_issue(s, nm):
    s('s_movk_i32 s60, 4096')
    for p in range(8):
        for x in old(p): s.vm(x, f'{nm}{p}')
def g_issue(s, nm): s.vm(f'buffer_load_dwordx2 v[20:21], v29, {sr(SWS,4)}, 0 offen sc1', f'{nm}0')

def final_stage(s, kh, cfg, tail):
    nm = 'OA' if kh == 0 else 'OB'
    UF, T2, ACC = 64, 96, 112
    s.stamp('Bu')
    for u in range(2):
        for ct in range(4):
            s.ds(f'ds_read_b128 {vr(UF+16*u+4*ct,4)}, v23 offset:{4096*u+256*ct}', f'uf{u}{ct}')
    if f'{nm}0' not in s.vt and cfg.get('oiss', 1) == 1: o_issue(s, nm)
    if cfg.get('wo_at', 'Bs') == 'Bu': s.run(wo_reads())
    for u in range(2):
        for ct in range(4):
            s.wait(dtag=f'uf{u}{ct}')
            s(mf16(vr(ACC+4*ct,4), vr(UF+16*u+4*ct,4), vr(T2+8*(ct>>1)+4*u,4), vr(ACC+4*ct,4) if u else '0'))
    if f'{nm}0' not in s.vt: o_issue(s, nm)
    if cfg.get('glate'): gather(s, 'GA' if kh == 0 else 'GB', 1, 20, 29, lambda p: '0 offen', lambda p: [], tail, width=2)
    for r in range(16): s(f'v_mul_f32 v{ACC+r}, v{ACC+r}, v20')
    s.wait(dtag='all')
    s.stamp('Y')
    give = (2, 3) if kh == 0 else (0, 1)
    keep = (0, 1) if kh == 0 else (2, 3)
    def work(p):
        return [mf16(vr(ACC+4*ct,4), vr(XF+16*p+4*ct,4), vr(OG+4*p,4), vr(ACC+4*ct,4)) for ct in give + keep]
    gather(s, nm, 8, OG, 14, osoff, work, tail, ldf=old, mask=True)
    s.stamp('og')
    for k, ct in enumerate(give): s.ds(f'ds_write_b128 v28, {vr(ACC+4*ct,4)} offset:{L_RX+1024*k}')
    s.wait(dtag='all'); s('s_barrier')
    for k in range(2): s.ds(f'ds_read_b128 {vr(UF+4*k,4)}, v30 offset:{L_RX+1024*k}', f'rx{k}')
    for k, ct in enumerate(keep):
        s.wait(dtag=f'rx{k}')
        for r in range(4): s(f'v_add_f32 v{ACC+4*ct+r}, v{ACC+4*ct+r}, v{UF+4*k+r}')
        s(f'v_cvt_pk_bf16_f32 v{OG+2*k}, v{ACC+4*ct}, v{ACC+4*ct+1}\nv_cvt_pk_bf16_f32 v{OG+2*k+1}, v{ACC+4*ct+2}, v{ACC+4*ct+3}')
    s(f'v_permlane16_swap_b32 v{OG}, v{OG+2}\nv_permlane16_swap_b32 v{OG+1}, v{OG+3}')
    s.vm(f'buffer_store_dwordx4 {vr(OG,4)}, v15, {sr(SOUT,4)}, 0 offen')
    s.stamp('end')

def wosrc(vWo):
    return f'''v_lshrrev_b32 v4, 3, v{vL}
v_and_b32 v5, 7, v{vL}
v_and_b32 v8, 2, v4
v_xor_b32 v5, v5, v8
v_lshlrev_b32 v5, 4, v5
s_movk_i32 s60, 896
v_mad_u32_u24 v{vWo}, v4, s60, v5
v_xor_b32 v5, 64, v{vWo}
v_add_u32 v{vWo+1}, 5376, v5
v_add_u32 v{vWo+2}, {2*5376}, v{vWo}
v_add_u32 v{vWo+3}, {3*5376}, v5
s_mul_i32 s38, s{sG}, {112*896}
s_lshl_b32 s60, s{sJ}, 7
s_add_u32 s38, s38, s60
s_mul_i32 s39, s{sG}, {112*128}
s_add_u32 s39, s39, {L_WO}'''.split('\n')
def wodma(k, vWo):
    it = [f's_add_u32 m0, s39, {3584*k}', f's_add_u32 s61, s38, {28*896*k}', 's_mov_b32 exec_hi, 0xffffff']
    for u in range(4):
        it.append(('vm', f'buffer_load_dwordx4 v{vWo+u}, {sr(SWO,4)}, s61 offen offset:{896*u} lds', f'wo{k}'))
    return it + ['s_mov_b32 exec_hi, -1']

def lastw(s, tags):
    t = [x for x in tags if x in s.vt]
    if t: s.wait(vtag=max(t, key=lambda x: s.vt[x]))

def gen_A(s, cfg, plan):
    ACC, P, EM, PH, WF, T = 64, 80, 96, 112, 248, 24
    KB = EM
    vPW, vPR, vVR, vPS, vOS = 240, 244, 245, 247, 2
    def M1(pt): return P if pt.startswith('pre') or pt[0] in 'wb' else 120
    vWv = 15
    tail = []
    clrb = cfg.get('clrb', 'v1')
    def items(pt):
        out = []
        for it in plan.get(pt, []):
            if it[0] == 'x': out.append(xdma(int(it[1])))
            elif it[0] == 'X':
                d = xdma(int(it[1]), 1); out.append(d[:3]); out.append(d[3:])
            elif it[0] == 'k': out.append(wdma('k', int(it[1]), vWs))
            elif it[0] == 'v': out.append(wdma('v', int(it[1]), vWv))
            elif it[0] == 'q': out.append(wdma('q', int(it[1]), 14))
            elif it == 'phi':
                out.append([f's_add_u32 m0, s{sWM}, {L_PHI}', ('vm', f'buffer_load_dwordx4 v{vPhi}, {sr(SPHI,4)}, 0 offen lds', 'phi')])
            elif it == 'pf': out.append([('fn', lambda: prefetch(s, 'A'))])
            elif it == 'tg': out.append(['s_waitcnt lgkmcnt(0)'] + TAGC)
            elif it == 'osrc': out.append(wosrc(64))
            elif it[0] == 'o': out.append(wodma(int(it[1]), 64))
            elif it == 'tlb':
                out.append([f's_load_dword s66, {sr(SWS,2)}, 0', f's_mov_b32 s60, {WS_U}', f's_load_dword s66, {sr(SWS,2)}, s60',
                            f's_mov_b32 s60, {WS_P}', f's_load_dword s66, {sr(SWS,2)}, s60', f's_load_dword s66, {sr(SOUT,2)}, 0'])
            else: raise ValueError(it)
        return out
    def do(pt): s.run(items(pt))
    def flag(): return []
    s(f's_setprio {cfg.get("prioA", 2)}')
    wsrc_setup(s)
    s(f'v_add_u32 v28, {2*458752}, v{vX}\nv_add_u32 v29, {2*458752}, v{vX+1}')
    s(f'''v_lshlrev_b32 v{v16}, 4, v{vL}
s_lshl_b32 s64, s{sH}, 2
s_add_u32 s64, s64, s{sG}
s_lshl_b32 s64, s64, 4
s_add_u32 s64, s64, s{sRB}
s_lshl_b32 s64, s64, 10
s_add_u32 s64, s64, {WS_P}
s_mov_b32 s{SWS+2}, {WS_N}
s_mov_b32 s{SWS+3}, 0x20000
s_mov_b32 s{sTAG+1}, {WS_F+0x1000}''')
    s('s_waitcnt lgkmcnt(0)')
    s.stamp('karg')
    do('pre0')
    s(f's_load_dword s{sTAG}, {sr(SWS,2)}, s{sTAG+1}')
    prologue2(s)
    s(f'''s_and_b32 s60, s{sG}, 1
s_lshl_b32 s60, s60, 4
v_add_u32 v9, s60, v4
s_cmp_lt_u32 s{sG}, 2
s_cselect_b32 s61, s{sH}, s{sHQ}
s_mul_i32 s61, s61, 1568
v_mad_u32_u24 v{vPhi}, v9, 56, v5
v_add_u32 v{vPhi}, s61, v{vPhi}
v_cmp_lt_u32 vcc, 27, v9
v_bfrev_b32 v9, 1
v_cndmask_b32 v{vPhi}, v{vPhi}, v9, vcc''')
    do('pre1')
    s(f'''v_lshl_add_u32 v{vPr}, v7, 8, v8
v_add_u32 v{vPr}, {L_PHI}, v{vPr}
v_add_u32 v{vWr2}, {L_WQ}, v{vWr}
v_add_u32 v{vWr}, {L_WK}, v{vWr}
v_add_u32 v{vWv}, 896, v{vWs}
s_sub_u32 s60, s{sHQ}, s{sH}
s_mul_i32 s60, s60, 56
s_sub_u32 s60, s60, 896
v_add_u32 v14, s60, v{vWs}
v_add_u32 v{vPS}, s64, v{v16}''')
    s(f'''v_and_b32 v9, 15, v{vL}
v_lshlrev_b32 v9, 4, v9
v_lshl_add_u32 v9, v7, 8, v9
v_lshrrev_b32 v4, 4, v6
v_lshl_add_u32 v9, v4, 14, v9
s_lshl_b32 s60, s{sBETA}, 15
s_lshl_b32 s61, s{sHQ}, 10
s_add_u32 s60, s60, s61
v_add_u32 v{vOS}, s60, v9
v_and_b32 v4, 7, v{vL}
v_xor_b32 v4, v4, v7
v_lshlrev_b32 v4, 4, v4
v_lshl_add_u32 v4, v6, 7, v4
s_lshl_b32 s60, s{sG}, 12
v_add_u32 v{vPW}, s60, v4
v_xor_b32 v{vPW+1}, 32, v{vPW}
v_xor_b32 v{vPW+2}, 64, v{vPW}
v_xor_b32 v{vPW+3}, 0x60, v{vPW}
v_lshrrev_b32 v4, 2, v{vL}
v_and_b32 v5, 7, v4
v_bfe_u32 v9, v{vL}, 1, 1
s_lshl_b32 s60, s{sG}, 1
v_or_b32 v9, s60, v9
v_xor_b32 v9, v9, v5
v_lshlrev_b32 v9, 4, v9
v_lshl_add_u32 v9, v4, 7, v9
v_and_b32 v8, 1, v{vL}
v_lshl_add_u32 v{vPR}, v8, 3, v9
v_lshrrev_b32 v5, 1, v5
v_xor_b32 v5, v5, v8
v_lshlrev_b32 v5, 4, v5
v_lshl_add_u32 v5, v4, 6, v5
v_bfe_u32 v9, v{vL}, 1, 1
v_lshl_add_u32 v5, v9, 3, v5
v_add_u32 v{vVR}, {L_V}, v5
v_xor_b32 v{vVR+1}, 32, v{vVR}''')
    for k in range(4): s(f'v_add_u32 v{24+k}, 0x10000, v{vXr+k}')
    do('pre2')
    phib = cfg.get('phib', 2)
    def pre(i): return [f'x{i}', f'wk{i}'] + (['phi'] if i == phib else []) + (['clr'] if i == clrb else []) + (['pf'] if i == 6 else [])
    def post(i):
        it = []
        if i == phib: it += [('ds', f'ds_read_b64_tr_b16 {vr(WF+2*j,2)}, v{vPr} offset:{512*j}', 'phik') for j in range(4)]
        if i == clrb: it += flag()
        return it
    chunk_loop(s, cfg, lambda sl: wread('k', sl), 'kf', lambda sl: mf32(vr(ACC,16), vr(RING+4*(sl%8),4), vr(XF+4*sl,4), vr(ACC,16) if sl else '0'),
               items, pre, post)
    s.stamp('kdone')
    do('kd')
    s('s_mov_b32 vcc_lo, 0\ns_mov_b32 vcc_hi, -1')
    for j in range(8): s(f'v_cvt_pk_bf16_f32 v{KB+j}, v{ACC+2*j}, v{ACC+2*j+1}')
    s(mf32(vr(P,16), vr(WF,4), vr(KB,4), '0'))
    s(mf32(vr(P,16), vr(WF+4,4), vr(KB+4,4), vr(P,16)))
    do('pk')
    nv1 = cfg.get('nv1', 7)
    for n, it in enumerate(softmax_items(P, EM, PH, T)):
        if n == cfg.get('bv1_at', 0):
            lastw(s, [f'wv{i}' for i in range(nv1)] + (['clr'] if clrb == 'v1' else [])); s('s_barrier')
            s.stamp('Bv1')
            if clrb == 'v1': s.run(flag())
        if nv1 < 7 and n == cfg.get('bv2_at', 90):
            s.stamp('vm0'); lastw(s, [f'wv{i}' for i in range(7)]); s.stamp('vm2'); s('s_barrier')
            s.stamp('Bv2')
        s(it)
        for ks in range(4):
            last = 4 * ks + 3
            if it.startswith(f'v_cvt_pk_bf16_f32 v{PH+last},'):
                assert n > cfg.get('bv1_at', 0)
                s.ds(f'ds_write_b128 v{vPW+ks}, {vr(PH+4*ks,4)}')
    s.stamp('smk')
    bp = cfg.get('bp', 0)
    if not bp: lastw(s, [f'wq{i}' for i in range(7)])
    s.wait(dtag='all'); s('s_barrier')
    s.stamp('Bkv')
    AF, BF, KV = RING, RING + 16, P
    for gp in range(4):
        s.ds(f'ds_read_b64_tr_b16 {vr(AF+4*gp,2)}, v{vPR} offset:{4096*gp}')
        s.ds(f'ds_read_b64_tr_b16 {vr(AF+4*gp+2,2)}, v{vPR} offset:{4096*gp+2048}')
        for t in range(2):
            s.ds(f'ds_read_b64_tr_b16 {vr(BF+8*gp+4*t,2)}, v{vVR+t} offset:{2048*gp}')
            s.ds(f'ds_read_b64_tr_b16 {vr(BF+8*gp+4*t+2,2)}, v{vVR+t} offset:{2048*gp+1024}', f'kv{gp}{t}')
    for gp in range(4):
        for t in range(2):
            s.wait(dtag=f'kv{gp}{t}')
            s(mf16(vr(KV+4*t,4), vr(AF+4*gp,4), vr(BF+8*gp+4*t,4), vr(KV+4*t,4) if gp else '0'))
    qg = gemm_groups('q', 0, 28, ACC)
    if not bp:
        head = qg[0][:8]; qg[0] = qg[0][8:]
        s.run(head)
    for j in range(4): s(f'v_cvt_pk_bf16_f32 v{KV+8+j}, v{KV+2*j}, v{KV+2*j+1}')
    s(f'v_permlane16_swap_b32 v{KV+9}, v{KV+11}\nv_permlane16_swap_b32 v{KV+8}, v{KV+10}\nv_and_b32 v{KV+11}, 0xffff, v{KV+11}\nv_or_b32 v{KV+11}, s{sTH}, v{KV+11}')
    s.vm(f'buffer_store_dwordx4 {vr(KV+8,4)}, v{vPS}, {sr(SWS,4)}, 0 offen sc1', 'pub')
    s.stamp('pub')
    if 'pA1' in cfg: s(f's_setprio {cfg["pA1"]}')
    do('pub')
    if bp:
        lastw(s, [f'wq{i}' for i in range(7)]); s('s_barrier'); s.stamp('Bp')
    fill = items('p0') + items('p1')
    fill += [('ds', f'ds_read_b64_tr_b16 {vr(WF+2*j,2)}, v{vPr} offset:{2048+512*j}', 'phiq') for j in range(4)]
    fill += f'''v_and_b32 v4, 31, v{vL}
v_lshlrev_b32 v4, 2, v4
s_lshl_b32 s60, s{sG}, 7
s_add_u32 s60, s60, {L_GX}
v_add_u32 v12, s60, v4
s_lshl_b32 s60, s{sBETA}, 8
s_add_u32 s60, s60, {WS_G}
s_cmp_eq_u32 s{sH}, 0
s_cselect_b32 s60, s60, 0x7ffff000
v_lshl_add_u32 v11, v4, 1, s60
v_bfe_u32 v4, v{vL}, 4, 1
v_bfe_u32 v5, v{vL}, 2, 1
v_lshl_add_u32 v4, v4, 1, v5
v_bfe_u32 v5, v{vL}, 3, 1
v_and_b32 v6, 3, v{vL}
v_lshl_add_u32 v5, v5, 2, v6
v_mad_u32_u24 v4, v4, 7, v5
v_cmp_eq_u32 vcc, 7, v5
v_cndmask_b32 v4, v4, 28, vcc
v_lshrrev_b32 v5, 5, v{vL}
v_lshl_add_u32 v4, v5, 5, v4
v_lshlrev_b32 v4, 4, v4
v_add_u32 v13, {L_KX}, v4'''.split('\n')
    fs = final_setup(0)
    if cfg.get('fsA_q', 1): fill += fs
    bq = cfg.get('bq_at', 27)
    qg[bq] = qg[bq] + [('st', 'Bq'), ('ds', 'ds_read_b32 v31, v12', 'gx')]
    s.run(spread(qg, fill, 2, 26))
    KB = RING
    s('s_mov_b32 vcc_lo, 0\ns_mov_b32 vcc_hi, -1')
    for j in range(8): s(f'v_cvt_pk_bf16_f32 v{KB+j}, v{ACC+2*j}, v{ACC+2*j+1}')
    s(mf32(vr(P,16), vr(WF,4), vr(KB,4), '0'))
    s(mf32(vr(P,16), vr(WF+4,4), vr(KB+4,4), vr(P,16)))
    s.wait(dtag='gx')
    s(f'v_mul_f32 v31, s{sC}, v31\nv_exp_f32 v31, v31\nv_add_f32 v31, 1.0, v31\nv_rcp_f32 v31, v31\nv_sub_f32 v4, 1.0, v31\nv_mov_b32 v5, s{sTAG}\ns_mov_b32 exec_hi, 0')
    s.vm(f'buffer_store_dwordx2 v[4:5], v11, {sr(SWS,4)}, 0 offen sc1')
    s('s_mov_b32 exec_hi, -1')
    s.run(softmax_items(P, 64, PH, 16))
    s.stamp('smq')
    if 'pA1' in cfg: s(f's_setprio {cfg.get("prioA", 2)}')
    if not cfg.get('fsA_q', 1): s.run(fs)
    do('smq')
    wol = cfg.get('wo_at', 'Bs') == 'Bu'
    if not wol: lastw(s, [f'wo{i}' for i in range(4)])
    s('s_barrier')
    s.stamp('Bs')
    for ks in range(4): s.ds(f'ds_read_b128 {vr(RING+4*ks,4)}, v13 offset:{1024*ks}', f'kx{ks}')
    for ks in range(4):
        s.wait(dtag=f'kx{ks}')
        s(mf32(vr(P,16), vr(RING+4*ks,4), vr(PH+4*ks,4), vr(P,16) if ks else '0'))
    OP = RING + 16
    s(f'''v_add_f32 v6, {f2h(1e-6)}, v{P+7}
v_rcp_f32 v6, v6
v_mul_f32 v6, v6, v31''')
    for q in range(2):
        for r in range(8 * q, 8 * q + 7): s(f'v_mul_f32 v{P+r}, v{P+r}, v6')
        for j in range(4 * q, 4 * q + 4): s(f'v_cvt_pk_bf16_f32 v{OP+j}, v{P+2*j}, ' + (f'v{P+2*j+1}' if j & 3 != 3 else f's{sTH}'))
        s.vm(f'buffer_store_dwordx4 {vr(OP+4*q,4)}, v{vOS}, {sr(SWS,4)}, 0 offen offset:{512*q} sc1')
    s.stamp('ost')
    s(f's_setprio {cfg.get("prioA2", 0)}\ns_cmp_ge_u32 s{sJ}, 7\ns_cbranch_scc1 A_FIN')
    do('ost')
    wr = [] if wol else wo_reads()
    nw = cfg.get('woA_pre', 64)
    s.run(wr[:nw])
    g_issue(s, 'GA')
    if cfg.get('oissA', 0) == -1: o_issue(s, 'OA')
    s.run(wr[nw:])
    if cfg.get('oissA', 0) == 0: o_issue(s, 'OA')
    if not cfg.get('glate'): gather(s, 'GA', 1, 20, 29, lambda p: '0 offen', lambda p: [], tail, width=2)
    if wol: s.vdone = 0; lastw(s, [f'wo{i}' for i in range(4)])
    s('s_barrier')
    final_stage(s, 0, cfg, tail)
    s('A_FIN:')
    stamp_store(s)
    s('s_endpgm')
    s.run(tail)

def gen_B(s, cfg, plan):
    AD, AV, T1 = 64, 80, 96
    vWv, vWq, vWo = 15, 14, 112
    vDr, vVW, vGt = 22, 30, 116
    tail = []
    def items(pt):
        out = []
        for it in plan.get(pt, []):
            if it[0] == 'x': out.append(xdma(int(it[1])))
            elif it[0] == 'X':
                d = xdma(int(it[1]), -1); out.append(d[:3]); out.append(d[3:])
            elif it[0] == 'k': out.append(wdma('k', int(it[1]), vWs))
            elif it[0] == 'v': out.append(wdma('v', int(it[1]), vWv))
            elif it[0] == 'q': out.append(wdma('q', int(it[1]), vWq))
            elif it == 'osrc': out.append(wosrc(vWo))
            elif it[0] == 'o': out.append(wodma(int(it[1]), vWo))
            elif it == 'pf': out.append([('fn', lambda: prefetch(s, 'B'))])
            elif it == 'pw':
                out.append(['s_lshr_b32 s60, s2, 3', 's_lshl_b32 s60, s60, 2', f's_add_u32 s60, s60, s{sG}', f's_mul_i32 s60, s60, {25*128}', f'v_lshlrev_b32 v126, 7, v{vL}',
                            's_mov_b32 exec_hi, 0', 's_mov_b32 exec_lo, 0x1ffffff', ('vm', f'buffer_load_dword v126, v126, {sr(SWO,4)}, s60 offen', 'pw'), 's_mov_b64 exec, -1'])
            elif it == 'gate':
                out.append(['s_mov_b64 exec, 0x3fff', ('vm', f'buffer_load_dwordx4 {vr(vGt,4)}, v121, {sr(SGW,4)}, 0 offen', 'gate'), 's_mov_b64 exec, -1'])
            else: raise ValueError(it)
        return out
    def do(pt): s.run(items(pt))
    s('B_START:')
    s(f'''s_mov_b32 s{SGW+2}, 896
s_mov_b32 s{SGW+3}, 0x20000
s_mul_i32 s60, s{sG}, 14
v_add_u32 v4, s60, v{vL}
v_lshrrev_b32 v5, 3, v4
v_add_u32 v5, s{sRHO}, v5
v_subrev_u32 v8, 7, v5
v_cmp_lt_u32 vcc, 6, v5
v_cndmask_b32 v5, v5, v8, vcc
v_and_b32 v8, 7, v4
v_lshlrev_b32 v8, 4, v8
v_lshl_add_u32 v121, v5, 7, v8
s_mov_b32 s{sTAG+1}, {WS_F+0x1000}
s_waitcnt lgkmcnt(0)
s_load_dword s{sTAG}, {sr(SWS,2)}, s{sTAG+1}''')
    s.stamp('karg')
    do('pre0')
    s(f'''v_lshrrev_b32 v5, 1, v4
v_and_b32 v8, 1, v4
v_lshlrev_b32 v8, 9, v8
v_lshl_add_u32 v120, v5, 10, v8
v_add_u32 v120, {L_DF + 14*16}, v120''')
    prologue2(s)
    do('pre1')
    wsrc_setup(s)
    s(f'''v_add_u32 v{vWr2}, {L_WV2}, v{vWr}
v_add_u32 v{vWr}, {L_SP}, v{vWr}
v_add_u32 v{vWv}, 896, v{vWs}
s_sub_u32 s60, s{sHQ}, s{sH}
s_mul_i32 s60, s60, 56
s_sub_u32 s60, s60, 896
v_add_u32 v{vWq}, s60, v{vWs}
v_subrev_u32 v28, {2*458752}, v{vX}
v_subrev_u32 v29, {2*458752}, v{vX+1}
v_add_u32 v{vDr}, {L_DF}, v{v16}''')
    do('pre2')
    s(f'''v_and_b32 v4, 15, v{vL}
v_min_u32 v5, 13, v4
s_mul_i32 s60, s{sH}, 14
v_add_u32 v5, s60, v5
v_cmp_eq_u32 vcc, 15, v4
v_mov_b32 v8, 224
v_cndmask_b32 v5, v5, v8, vcc
v_cvt_f32_u32 v5, v5
v_mul_f32 v124, {f2h(1/448)}, v5
v_bfe_u32 v4, v{vL}, 4, 1
v_cvt_f32_u32 v4, v4
v_mul_f32 v4, 0x3e800000, v4
s_lshl_b32 s60, s{sG}, 4
v_lshl_add_u32 v5, v7, 3, s60
v_cvt_f32_u32 v5, v5
v_fma_f32 v125, v5, v124, v4
s_lshl_b32 s60, s{sG}, 10
v_add_u32 v126, s60, v{vDr}''')
    s('v_cos_f32 v123, v124')
    s('v_add_f32 v123, v123, v123')
    def dfrag(i, R=None):
        R, c = R or 240 + 4 * (i & 1), [4, 5, 8, 9]
        it = [f's_lshr_b32 s60, s{sCX+i}, 1', 'v_cvt_f32_u32 v4, s60', 'v_fma_f32 v4, v4, v124, v125', 'v_add_f32 v5, v4, v124',
              'v_cos_f32 v4, v4', 'v_cos_f32 v5, v5']
        for j in range(4):
            a, b, p, q = c[(2*j) & 3], c[(2*j+1) & 3], c[(2*j+2) & 3], c[(2*j+3) & 3]
            if j < 3: it += [f'v_fma_f32 v{p}, v123, v{b}, -v{a}', f'v_cvt_pk_bf16_f32 v{R+j}, v{a}, v{b}', f'v_fma_f32 v{q}, v123, v{p}, -v{b}']
            else: it += [f'v_cvt_pk_bf16_f32 v{R+j}, v{a}, v{b}']
        it += ['s_mov_b32 exec_lo, 0xffffbfff', 's_mov_b32 exec_hi, 0xffffbfff', ('ds', f'ds_write_b128 v126, {vr(R,4)} offset:{4096*i}', f'dfw{i}'), 's_mov_b64 exec, -1']
        return it
    ndf = cfg.get('ndf', 3)
    for k in range(4): s(f'v_add_u32 v{24+k}, 0x10000, v{vXr+k}')
    dfw = []
    for i in range(ndf):
        d = dfrag(i, 208 + 4 * i if cfg.get('dfdefer') else None)
        if cfg.get('dfdefer'): s.run(d[:-4]); dfw.append(d[-2])
        else: s.run(d)
    do('pre3')
    tw = ['v_lshrrev_b32 v4, 1, v6', 'v_cvt_f32_u32 v122, v4', f'v_mul_f32 v122, {f2h(1/32)}, v122', 'v_and_b32 v5, 1, v6',
          'v_cvt_f32_u32 v5, v5', 'v_mul_f32 v5, 0x3e800000, v5', 'v_cvt_f32_u32 v8, v7', 'v_mul_f32 v8, 4.0, v8', 'v_fma_f32 v127, v122, v8, v5',
          'v_and_b32 v4, 1, v4', 'v_mul_u32_u24 v2, 0x8000, v4', 'v_lshl_or_b32 v2, v2, 16, v2']
    for j in range(4):
        o = 2 * (j & 1) + 8 * (j >> 1)
        tw += [f'v_fmamk_f32 v8, v122, {f2h(o)}, v127', f'v_fmamk_f32 v9, v122, {f2h(o+1)}, v127',
               'v_cos_f32 v4, v8', 'v_cos_f32 v5, v9', 'v_sin_f32 v8, v8', 'v_sin_f32 v9, v9',
               f'v_cvt_pk_bf16_f32 v{T1+j}, v4, v5', f'v_cvt_pk_bf16_f32 v{T1+8+j}, v8, v9',
               f'v_xor_b32 v{T1+4+j}, v2, v{T1+j}', f'v_xor_b32 v{T1+12+j}, v2, v{T1+8+j}']
    tw += f'''v_bfe_u32 v4, v{vL}, 1, 2
v_xor_b32 v4, v4, v7
v_lshlrev_b32 v4, 4, v4
v_lshl_add_u32 v4, v6, 6, v4
s_lshl_b32 s60, s{sG}, 11
s_add_u32 s60, s60, {L_V}
v_add_u32 v{vVW}, s60, v4
v_xor_b32 v{vVW+1}, 32, v{vVW}
s_lshl_b32 s60, s{sHQ}, 2
s_add_u32 s60, s60, s{sG}
s_lshl_b32 s60, s60, 14
s_add_u32 s60, s60, {WS_P}
v_add_u32 v13, s60, v{v16}'''.split('\n')
    lf = {i: [] for i in range(7)}
    for i in range(ndf, 7): lf[i - ndf + cfg.get('dfo', 0)] += dfrag(i)
    tw0 = cfg.get('tw0', 7 - ndf)
    if tw0 < 0: s.run(tw)
    else:
        cuts = [0, 22, 32, 42, 52, len(tw)]
        seg = [tw[cuts[k]:cuts[k+1]] for k in range(5)]
        n = 7 - tw0
        for k in range(5): lf[tw0 + k * n // 5] += seg[k]
    def postB(i): return lf[i]
    def dread(sl): return [('ds', f'ds_read_b128 {vr(RING+4*(sl%8),4)}, v{vDr} offset:{1024*sl}', f'df{sl}')]
    s.stamp('dfd')
    if dfw: s.run(['s_mov_b32 exec_lo, 0xffffbfff', 's_mov_b32 exec_hi, 0xffffbfff'] + dfw + ['s_mov_b64 exec, -1'])
    s.wait(vtag='gate')
    s.stamp('gw')
    s('s_mov_b64 exec, 0x3fff')
    s.ds(f'ds_write_b128 v120, {vr(vGt,4)}')
    s('s_mov_b64 exec, -1')
    s.wait(dtag='all')
    s.run(TAGC)
    chunk_loop(s, cfg, dread, 'df', lambda sl: mf32(vr(AD,16), vr(XF+4*sl,4), vr(RING+4*(sl%8),4), vr(AD,16) if sl else '0'),
               items, lambda i: [f'x{i}', f'wk{i}'] + (['pf'] if i == 6 else []), postB)
    VB = 116
    s.stamp('kdone')
    do('kd')
    nv1 = cfg.get('nv1', 7)
    PK, QK, UA, UP = 240, 248, AD, 240
    lastw(s, [f'wv{i}' for i in range(nv1)]); s('s_barrier')
    s.stamp('Bv1')
    if 'pB0' in cfg: s(f's_setprio {cfg["pB0"]}')
    st1 = f'''v_lshlrev_b32 v4, 4, v7
s_lshl_b32 s60, s{sG}, 7
s_add_u32 s60, s60, {L_GX}
v_add_u32 v10, s60, v4
s_lshl_b32 s60, s{sG}, 2
s_add_u32 s60, s60, {L_UX}
v_add_u32 v11, s60, v{v16}'''.split('\n')
    st1.append(['s_mov_b32 exec_lo, 0x4000', 's_mov_b32 exec_hi, 0x4000'] + [('ds', f'ds_write_b128 v10, {vr(AD+4*q,4)} offset:{32*q}', 'gxw') for q in range(4)] +
               ['s_mov_b64 exec, -1'])
    for j in range(8): st1.append(f'v_cvt_pk_bf16_f32 v{PK+j}, v{AD+2*j}, v{AD+2*j+1}')
    for j in range(8): st1.append(f'v_xor_b32 v{QK+j}, 0x80000000, v{PK+j}')
    for j in range(8): st1.append(f'v_permlane16_swap_b32 v{PK+j}, v{QK+j}')
    st1.append([('wl', 'gxw'), mf32(vr(UA,16), vr(T1,4), vr(PK,4), '0'), mf32(vr(UA,16), vr(T1+4,4), vr(PK+4,4), vr(UA,16)),
                mf32(vr(UA,16), vr(T1+8,4), vr(QK,4), vr(UA,16)), mf32(vr(UA,16), vr(T1+12,4), vr(QK+4,4), vr(UA,16))])
    ua = uaddr(8, 44, 45) + [f's_lshl_b32 s60, s{sG}, 11', f's_add_u32 s60, s60, {L_UX}', f'v_add_u32 v12, s60, v{v16}']
    st2 = []
    for i in range(8): st2 += [f'v_cvt_pk_bf16_f32 v{UP+i}, v{UA+2*i}, v{UA+2*i+1}', ('ds', f'ds_write_b32 v11, v{UP+i} offset:{1024*i}', 'uxw')]
    urd = [('ds', f'ds_read_b128 {vr(UP+8,4)}, v12', 'u0'), ('ds', f'ds_read_b128 {vr(UP+12,4)}, v12 offset:1024', 'u1')]
    ust = [('wl', 'u1'), ('vm', f'buffer_store_dwordx4 {vr(UP+8,4)}, v8, {sr(SWS,4)}, s44 offen sc1'),
           ('vm', f'buffer_store_dwordx4 {vr(UP+12,4)}, v8, {sr(SWS,4)}, s45 offen sc1', 'ust'), ('st', 'ui')]
    assert nv1 < 7
    g1 = gemm_groups('v', 0, 4 * nv1, AV)
    g2 = gemm_groups('v', 4 * nv1, 28, AV)
    n1 = len(g1)
    s.run(spread(g1, items('v0') + st1 + items('v1') + ua + st2, cfg.get('vf0', 0), cfg.get('vf1', n1)))
    s.stamp('vm0'); do('vm'); s.stamp('vm1')
    lastw(s, [f'wv{i}' for i in range(7)]); s.wait(dtag='uxw'); s.stamp('vm2'); s('s_barrier'); s.stamp('Bv2')
    g2[0] = g2[0][:8] + urd + g2[0][8:]
    vg = g2
    fill = [ust] + items('v2') + ['s_movk_i32 s48, 4096', 's_movk_i32 s49, 8192', 's_movk_i32 s50, 12288']
    s.run(spread(vg, fill, cfg.get('vf2', 1), cfg.get('vf3', 10)))
    s(f'v_mov_b32 v{VB+6}, 0x3f80\nv_mov_b32 v{VB+7}, 0')
    FC = [f'v_cmp_ne_u32 vcc, s{sTAG}, v127']
    FL = [f'buffer_load_dword v127, v2, {sr(SWS,4)}, s{sTAG+1} offen sc1']
    tail += ['B_USPIN:', 's_movk_i32 s67, 2000', 'B_USP:'] + FL + ['s_sub_u32 s67, s67, 1',
             's_waitcnt vmcnt(0)', 's_cmp_eq_u32 s67, 0', 's_cbranch_scc1 B_UOK'] + FC + ['s_cbranch_vccnz B_USP', 's_branch B_UOK']
    for u in range(2):
        for j in range(4 * u, 4 * u + 4):
            if j == 6: s('s_mov_b32 exec_hi, 0')
            s(f'v_cvt_pk_bf16_f32 v{VB+j}, v{AV+2*j}, v{AV+2*j+1}')
        if u == 1: s('s_mov_b32 exec_hi, -1')
        s.ds(f'ds_write_b128 v{vVW+u}, {vr(VB+4*u,4)}')
    bp = cfg.get('bp', 0)
    s.stamp('vdone')
    if not bp: lastw(s, [f'wq{i}' for i in range(7)])
    if 'pB0' in cfg: s('s_setprio 0')
    s.wait(dtag='all'); s('s_barrier')
    s.stamp('Bkv')
    GB, SUM, UL = XF, 192, 112
    def psoff(p): return ['0', 's48', 's49', 's50'][p >> 2] + ' offen' + (f' offset:{1024*(p&3)}' if p & 3 else '')
    def pissue():
        s.stamp('gi')
        for p in range(16): s.vm(f'buffer_load_dwordx4 {vr(GB+4*p,4)}, v13, {sr(SWS,4)}, {psoff(p)} sc1', f'PG{p}')
    f2a = [f's_lshl_b32 s61, s{sRB}, 4', f's_add_u32 s61, s61, s{sH}', 's_lshl_b32 s61, s61, 2', f's_add_u32 s61, s61, s{sG}', 's_lshl_b32 s61, s61, 7', f's_add_u32 s61, s61, {WS_F2}',
           f'v_mov_b32 v4, s{sTAG}', 'v_mov_b32 v5, s61', ('wv', 'ust'), 's_mov_b64 exec, 1',
           ('vm', f'buffer_store_dword v4, v5, {sr(SWS,4)}, 0 offen sc1', 'f2'), 's_mov_b64 exec, -1', ('st', 'f2')]
    f2b = []
    SEL = 208
    sel = f'''v_bfe_u32 v4, v{vL}, 3, 2
v_and_b32 v5, 3, v{vL}
v_lshl_add_u32 v4, v4, 2, v5
v_bfe_u32 v5, v{vL}, 2, 1
v_lshrrev_b32 v6, 5, v{vL}
v_xor_b32 v5, v5, v6
v_lshl_add_u32 v4, v5, 4, v4
v_and_b32 v5, 1, v4
v_lshlrev_b32 v5, 4, v5
v_mov_b32 v6, 0x3f80
v_lshlrev_b32 v5, v5, v6
v_lshrrev_b32 v6, 1, v4
v_cmp_eq_u32 vcc, 0, v6
v_cndmask_b32 v{SEL}, 0, v5, vcc
v_cmp_eq_u32 vcc, 1, v6
v_cndmask_b32 v{SEL+1}, 0, v5, vcc
v_cmp_eq_u32 vcc, 2, v6
v_cndmask_b32 v{SEL+2}, 0, v5, vcc
v_cmp_eq_u32 vcc, 6, v4
v_cndmask_b32 v{SEL+3}, 0, v5, vcc'''.split('\n')
    f2w = cfg.get('f2w', 1)
    do('kv0')
    fsB = cfg.get('fsB', 1)
    if fsB == 0: s.run(final_setup(1))
    do('kv1')
    if bp:
        lastw(s, [f'wq{i}' for i in range(7)]); s('s_barrier')
        s.stamp('Bp')
    if f2w == 0: s.run(f2a + f2b)
    do('kv2')
    if fsB == 1: s.run(final_setup(1))
    do('kv')
    if f2w == 1: s.run(f2a + f2b)
    pissue()
    if 'pB1' in cfg: s(f's_setprio {cfg["pB1"]}')
    do('q')
    if fsB == 2: s.run(final_setup(1))
    s.run(sel)
    s(f'''s_lshl_b32 s60, s{sJ}, 6
v_add_u32 v4, s60, v{vL}
v_sub_u32 v5, 448, v4
s_movk_i32 s61, 224
v_cmp_le_u32 vcc, s61, v4
v_cndmask_b32 v4, v4, v5, vcc
s_sub_u32 s61, 32, s{sCL}
s_and_b32 s61, s61, 31
v_mov_b32 v5, s{sCL}
v_mov_b32 v6, s61
v_cndmask_b32 v5, v5, v6, vcc
v_mul_u32_u24 v6, 4682, v4
v_lshrrev_b32 v6, 16, v6
v_lshl_add_u32 v4, v6, 1, v4
v_lshlrev_b32 v4, 4, v4
v_min_u32 v4, 4080, v4
v_lshl_add_u32 v10, v5, 16, v4
v_min_u32 v6, 15, v6
v_bfe_u32 v5, v5, 2, 2
v_lshl_add_u32 v5, v6, 2, v5
v_and_b32 v4, 15, v{vL}
v_bfe_u32 v6, v{vL}, 3, 1
v_lshlrev_b32 v4, 4, v4
v_mad_u32_u24 v4, v6, 12, v4''')
    s.ds('ds_bpermute_b32 v2, v4, v5', 'fperm')
    s(f'''v_lshrrev_b32 v4, 4, v{vL}
s_lshl_b32 s{sTAG+1}, s{sG}, 15
s_add_u32 s{sTAG+1}, s{sTAG+1}, {WS_F2}
s_lshl_b32 s60, s{sG}, 14
s_add_u32 s60, s60, {WS_U}
v_add_u32 v10, s60, v10
s_lshl_b32 s61, s{sG}, 12
s_add_u32 s61, s61, {L_UT}
v_add_u32 v11, s61, v{v16}
s_lshl_b32 s60, s{sG}, 10
s_add_u32 s60, s60, {L_KX}
v_add_u32 v12, s60, v{v16}''')
    s.wait(dtag='fperm')
    s('v_lshl_add_u32 v2, v4, 6, v2\nv_lshlrev_b32 v2, 7, v2')
    if f2w == 2: s.run(f2a + f2b)
    def usoff(p): return ['0', 's48', 's49', 's50'][p]
    def uissue():
        for p in range(4): s.vm(f'buffer_load_dwordx4 {vr(UL+4*p,4)}, v10, {sr(SWS,4)}, {usoff(p)} offen sc1', f'UG{p}')
        if not cfg.get('uearly'): g_issue(s, 'GB')
    fl2 = [('vm', FL[0], 'fl2')] if not cfg.get('nof2') else []
    f2p = cfg.get('fl2_at', 8)
    def work(p): return [mf32(vr(SUM,16), vr(SEL,4), vr(GB+4*p,4), vr(SUM,16) if p else '0')]
    if f2p < 0: s.run(fl2)
    gather(s, 'PG', 16, GB, 13, psoff, work, tail)
    if s.stamp_on: s('s_mov_b32 s100, s67')
    for j in range(4): s(f'v_cvt_pk_bf16_f32 v{SUM+8+j}, v{SUM+2*j}, v{SUM+2*j+1}')
    s.ds(f'ds_write_b128 v12, {vr(SUM+8,4)}')
    s.stamp('gok')
    if 'pB1' in cfg: s(f's_setprio 0')
    s.vdone = 0
    if f2w == 3: s.run(f2a + f2b)
    if f2p >= 0: s.run(fl2)
    do('gk')
    ue = cfg.get('uearly')
    if ue:
        s.wait(dtag='all')
        s(f's_cmp_ge_u32 s{sJ}, 7\ns_cbranch_scc1 B_J7')
        tail += ['B_J7:', 's_waitcnt vmcnt(0)', 's_barrier', 's_branch B_FIN']
        if ue == 2: lastw(s, [f'wo{i}' for i in range(4)]); s('s_barrier'); s.stamp('Bs')
        if fl2: s.wait(vtag='fl2'); s.run(FC + ['s_cbranch_vccnz B_USPIN'])
        s('B_UOK:')
        s.stamp('UG0')
        uissue()
    wol = cfg.get('wo_at', 'Bs') == 'Bu'
    if ue != 2:
        if not wol: lastw(s, [f'wo{i}' for i in range(4)])
        s.wait(dtag='all'); s('s_barrier')
        s.stamp('Bs')
    if not ue: s(f's_cmp_ge_u32 s{sJ}, 7\ns_cbranch_scc1 B_FIN')
    wr = [] if wol else wo_reads()
    nw = cfg.get('woB_pre', 0)
    s.run(wr[:nw])
    if not ue:
        if fl2: s.wait(vtag='fl2'); s.run(FC + ['s_cbranch_vccnz B_USPIN'])
        s('B_UOK:')
        s.stamp('UG0')
        uissue()
    else: g_issue(s, 'GB')
    do('us')
    s.run(wr[nw:])
    if cfg.get('oissB', 0) == -1: o_issue(s, 'OB')
    for p in range(4):
        s.wait(vtag=f'UG{p}'); s.ds(f'ds_write_b128 v11, {vr(UL+4*p,4)} offset:{1024*p}')
    if not cfg.get('glate'): gather(s, 'GB', 1, 20, 29, lambda p: '0 offen', lambda p: [], tail, width=2)
    if s.stamp_on: s('s_mov_b32 s101, s67')
    s.stamp('uok')
    if cfg.get('oissB', 0) == 0: o_issue(s, 'OB')
    if wol: s.vdone = 0; lastw(s, [f'wo{i}' for i in range(4)])
    s.wait(dtag='all')
    s('s_barrier')
    final_stage(s, 1, cfg, tail)
    s(f'''s_lshl_b32 s60, s2, 3
s_add_u32 s60, s60, s{sW}
s_cmp_lg_u32 s60, 4
s_cbranch_scc1 B_FIN
v_mov_b32 v4, s{sTAG}
v_mov_b32 v5, {WS_F+0x1000}
s_mov_b64 exec, 1
buffer_store_dword v4, v5, {sr(SWS,4)}, 0 offen sc1''')
    s('B_FIN:')
    stamp_store(s)
    s('K_END:\ns_endpgm')
    s.run(tail)

def build(cfg):
    SELRT[0] = cfg.get('selrt', 0)
    plan = {r: dict(DEF_PLAN[r]) for r in 'AB'}
    for r in 'AB': plan[r].update(cfg.get('plan', {}).get(r, {}))
    a = Sched(); a.stamp_on = cfg.get('stamps', False); a.stamp_base = STB
    EARLY = [f'W{i}' for i in range(7)] + [f'B{i}' for i in range(1, 7)]
    LATE = ['Bkv', 'pub', 'Bq', 'smq', 'Bs', 'ost', 'Bu', 'OA0', 'OB0', 'og', 'end', 'dbgok', 'gi', 'PG0', 'gok', 'uok', 'drain', 'GA0', 'GB0', 'UG0', 'Y']
    if cfg.get('mid'):
        cfg['skipA'] = EARLY[:5] + ['B1', 'B2', 'B3', 'B4', 'B5', 'Bs', 'ost', 'Bu', 'OA0', 'og', 'end', 'GA0', 'Y', 'drain', 'fok', 'karg']
        cfg['skipB'] = EARLY[:5] + ['B0', 'B1', 'B2', 'B3', 'B4', 'B5', 'Bs', 'Bu', 'OB0', 'og', 'end', 'GB0', 'UG0', 'Y', 'drain', 'uok']
    LATE += ['smk', 'vdone', 'Bv2', 'Bp', 'f2', 'fok', 'vm0', 'vm1', 'vm2', 'ui']
    if cfg.get('mid'):
        cfg['skipB'] += ['dfd', 'gw', 'W5', 'W6', 'B6', 'karg']; cfg['skipA'] += ['W5', 'W6']
    if cfg.get('early'):
        cfg['skipA'] = LATE + ['B1', 'B3', 'B5', 'B4']; cfg['skipB'] = LATE + ['B1', 'B3', 'B5', 'B4', 'B2', 'B6']
    a.stamp_skip = cfg.get('skipA', EARLY + ['GA0', 'Y', 'drain', 'smk', 'Bv2', 'karg', 'vm0', 'vm2'])
    prologue(a)
    b = Sched(); b.a = a.a; b.stamp_on = a.stamp_on; b.stamp_base = STB; b.stamps = list(a.stamps)
    b.stamp_skip = cfg.get('skipB', EARLY + ['B0', 'Bs', 'Y', 'end', 'GB0', 'kdone', 'vdone', 'Bv2', 'dfd', 'gw', 'vm0', 'vm1', 'vm2', 'ui'])
    gen_A(a, cfg, plan['A'])
    gen_B(b, cfg, plan['B'])
    assert len(a.stamps) <= 15 and len(b.stamps) <= 15, (a.stamps, b.stamps)
    txt = build_file([dict(name=KN, asm=a.a, grid=256, block=512, lds=163840, vgpr=256, agpr=0)])
    return txt, a, b

if __name__ == '__main__':
    cfg = json.loads(sys.argv[2]) if len(sys.argv) > 2 else {}
    txt, a, b = build(cfg)
    open(sys.argv[1], 'w').write(txt)
    print('instrs', a.a.count, 'nops', a.a.nops)
    print('stamps', a.stamps, b.stamps)
```

```python
import sys, json, struct
sys.path.insert(0, 'work')
from gen_lib import *
BASE = 'gated_mix__spectral_fnet__linear_kernel_hedgehog__prompt'
KN = BASE + '_kernel'
WS_O, WS_U, WS_P, WS_G, WS_ST = 0, 0x200000, 0x400000, 0x510000, 0x600000
WS_N = 0x700000
WS_F2 = 0x520000
WS_F = 0x500000
sTAG, sTH = 36, 30
TAGC = [f's_lshr_b32 s{sTAG}, s{sTAG}, 16', f's_add_u32 s{sTAG}, s{sTAG}, 1', f's_and_b32 s{sTAG}, s{sTAG}, 0x9fff', f's_or_b32 s{sTAG}, s{sTAG}, 0x2000',
        f's_lshl_b32 s{sTH}, s{sTAG}, 16', f's_or_b32 s{sTAG}, s{sTAG}, s{sTH}']
LOG2E = 0x3fb8aa3b
def f2h(x): return '0x%08x' % struct.unpack('<I', struct.pack('<f', x))[0]
def vr(b, n): return 'v[%d:%d]' % (b, b + n - 1)
def sr(b, n): return 's[%d:%d]' % (b, b + n - 1)
def mf32(d, a, b, c): return 'v_mfma_f32_32x32x16_bf16 %s, %s, %s, %s' % (d, a, b, c)
def mf16(d, a, b, c): return 'v_mfma_f32_16x16x32_bf16 %s, %s, %s, %s' % (d, a, b, c)

sW, sRB, sH, sHQ, sBETA, sG, sCL, sJ, sRHO = 3, 4, 5, 6, 7, 8, 9, 10, 11
SX, SWQ, SPHI, SWO, SGW, SWS, SDBG, SOUT = 12, 16, 20, 24, 28, 32, 36, 40
sCX, sCW = 44, 51
sGA = 44
sXM, sWM = 58, 59
T0 = 60
sC, sNC = 68, 69
STB = 70
L_WK, L_DF, L_PHI, L_SP = 81920, 110592, 139264, 143360
L_PH, L_V, L_WV2, L_WQ, L_WO = 0, 16384, 32768, 49152, 81920
L_UX, L_GX, L_KX = 40960, 77824, 152064
L_UT, L_RX = 32768, 0
vL, v16 = 1, 3
vWs, vX, vPhi = 10, 11, 13
vXr, vWr, vWr2, vPr = 16, 20, 21, 22
RING, XF = 32, 128

def stamp_store(s):
    if not s.stamp_on: return
    s('s_mov_b64 exec, -1\ns_waitcnt vmcnt(0)')
    s.stamp('drain')
    s('s_waitcnt lgkmcnt(0)')
    s(f's_lshl_b32 s60, s2, 3\ns_add_u32 s60, s60, s{sW}\ns_lshl_b32 s60, s60, 7\ns_add_u32 s60, s60, {WS_ST}\nv_mov_b32 v4, s60\ns_mov_b64 exec, 1')
    s(f'v_mov_b32 v5, s100\nbuffer_store_dword v5, v4, {sr(SWS,4)}, 0 offen offset:64')
    s(f'v_mov_b32 v5, s67\nbuffer_store_dword v5, v4, {sr(SWS,4)}, 0 offen offset:68')
    s(f'v_mov_b32 v5, s101\nbuffer_store_dword v5, v4, {sr(SWS,4)}, 0 offen offset:72')
    for i in range(len(s.stamps)):
        s(f'v_mov_b32 v5, s{s.stamp_base+2*i}\nbuffer_store_dword v5, v4, {sr(SWS,4)}, 0 offen offset:{4*i}')

def softmax_items(P, EM, PH, T):
    it = []
    mx, mn = T, T + 1
    it.append(f'v_cndmask_b32 v{P+12}, v{P+12}, v{P+14}, vcc')
    it.append(f'v_cndmask_b32 v{P+13}, v{P+13}, v{P+15}, vcc')
    it.append(f'v_max3_f32 v{mx}, v{P}, v{P+1}, v{P+2}')
    it.append(f'v_max3_f32 v{mn}, -v{P}, -v{P+1}, -v{P+2}')
    for k in range(3, 13, 2):
        it.append(f'v_max3_f32 v{mx}, v{mx}, v{P+k}, v{P+k+1}')
        it.append(f'v_max3_f32 v{mn}, v{mn}, -v{P+k}, -v{P+k+1}')
    it.append(f'v_max_f32 v{mx}, v{mx}, v{P+13}')
    it.append(f'v_max_f32 v{mn}, v{mn}, -v{P+13}')
    it.append(f'v_permlane32_swap_b32 v{mx}, v{mn}')
    it.append(f'v_max_f32 v{mx}, v{mx}, v{mn}')
    it.append(f'v_mul_f32 v{mx}, s{sNC}, v{mx}')
    it.append(f'v_mov_b32 v{mn}, v{mx}')
    it.append(f'v_permlane32_swap_b32 v{mx}, v{mn}')
    sp = [T + 2, T + 3]; sm = [T + 4, T + 5]
    for r in range(14):
        it.append(f'v_fma_f32 v{EM+r}, v{P+r}, s{sNC}, v{mn}')
        it.append(f'v_fma_f32 v{P+r}, v{P+r}, s{sC}, v{mx}')
        it.append(f'v_exp_f32 v{EM+r}, v{EM+r}')
        it.append(f'v_exp_f32 v{P+r}, v{P+r}')
        q = r - 1
        if q == 2:
            it.append(f'v_add_f32 v{sm[0]}, v{EM}, v{EM+2}'); it.append(f'v_add_f32 v{sp[0]}, v{P}, v{P+2}')
        elif q == 3:
            it.append(f'v_add_f32 v{sm[1]}, v{EM+1}, v{EM+3}'); it.append(f'v_add_f32 v{sp[1]}, v{P+1}, v{P+3}')
        elif q > 3:
            it.append(f'v_add_f32 v{sm[q&1]}, v{sm[q&1]}, v{EM+q}'); it.append(f'v_add_f32 v{sp[q&1]}, v{sp[q&1]}, v{P+q}')
    it.append(f'v_add_f32 v{sm[0]}, v{sm[0]}, v{sm[1]}'); it.append(f'v_add_f32 v{sp[0]}, v{sp[0]}, v{sp[1]}')
    it.append(f'v_add_f32 v{sm[0]}, v{sm[0]}, v{EM+13}'); it.append(f'v_add_f32 v{sp[0]}, v{sp[0]}, v{P+13}')
    it.append(f'v_permlane32_swap_b32 v{sp[0]}, v{sm[0]}')
    it.append(f'v_add_f32 v{sp[0]}, v{sp[0]}, v{sm[0]}')
    it.append(f'v_rcp_f32 v{sp[0]}, v{sp[0]}')
    it.append(f'v_mov_b32 v{sm[0]}, v{sp[0]}')
    it.append(f'v_permlane32_swap_b32 v{sp[0]}, v{sm[0]}')
    for ks in range(4):
        b = (P if ks < 2 else EM) + 7 * (ks & 1); sc = sp[0] if ks < 2 else sm[0]
        for t in range(4):
            it.append(f'v_mul_f32 v{b+2*t}, v{b+2*t}, v{sc}')
            if t < 3: it.append(f'v_mul_f32 v{b+2*t+1}, v{b+2*t+1}, v{sc}')
            it.append(f'v_cvt_pk_bf16_f32 v{PH+4*ks+t}, v{b+2*t}, ' + (f'v{b+2*t+1}' if t < 3 else '0'))
    return it

def xdma(i, both=0):
    sl = i % 5
    it = [f's_add_u32 m0, s{sXM}, {16384*sl}',
          ('vm', f'buffer_load_dwordx4 v{vX}, {sr(SX,4)}, s{sCX+i} offen lds'),
          ('vm', f'buffer_load_dwordx4 v{vX+1}, {sr(SX,4)}, s{sCX+i} offen offset:1024 lds', f'x{i}')]
    if both:
        it += [f's_add_u32 m0, s{sXM}, {16384*sl+2048*both}',
               ('vm', f'buffer_load_dwordx4 v28, {sr(SX,4)}, s{sCX+i} offen lds'),
               ('vm', f'buffer_load_dwordx4 v29, {sr(SX,4)}, s{sCX+i} offen offset:1024 lds', f'x{i}')]
    return it
WPOL = ['']
def wdst(kind, i):
    if kind == 'k': return L_WK + 4096 * i
    if kind == 'v': return L_SP + 4096 * i if i < 5 else L_WV2 + 4096 * (i - 5)
    return L_WQ + 4096 * i
def wdma(kind, i, vsrc):
    return [f's_add_u32 m0, s{sWM}, {wdst(kind, i)}',
            ('vm', f'buffer_load_dwordx4 v{vsrc}, {sr(SWQ,4)}, s{sCW+i} offen{WPOL[0]} lds', f'w{kind}{i}')]

DEF_PLAN = {
    'A': {'pre0': ['k0', 'x0', 'k1', 'x1'], 'pre1': ['phi', 'k2', 'x2'], 'b0': ['k3', 'x3', 'clr']},
    'B': {'pre0': ['x0', 'gate', 'x1'], 'pre1': ['x2'], 'b0': ['x3', 'k4', 'X4'], 'b1': ['k5', 'X5'], 'b2': ['k6', 'X6'], 'b3': ['v0', 'v1', 'v2', 'v3'],
          'b4': ['v4', 'v5', 'v6'], 'b5': ['q0', 'q1', 'q2'], 'b6': ['q3', 'q4', 'q5', 'q6'], 'v2': ['dbg'], 'kv': ['o0', 'o1', 'o2', 'o3']},
}

def chunk_sgprs(s, lo, hi):
    for i in range(lo, hi):
        if i: s('s_add_u32 s62, s62, 1\ns_cmp_eq_u32 s62, 7\ns_cselect_b32 s62, 0, s62')
        s(f's_lshl_b32 s{sCX+i}, s62, 7\ns_mul_i32 s{sCW+i}, s62, {64*2688}')

def prologue(s, cfg={}):
    s('s_cmp_ge_u32 s2, 256\ns_cbranch_scc1 K_END')
    s.stamp('start')
    s(f'''s_load_dwordx2 {sr(SWQ,2)}, s[0:1], 48
s_load_dwordx2 {sr(SX,2)}, s[0:1], 0
s_load_dwordx2 {sr(SPHI,2)}, s[0:1], 56
s_load_dwordx2 {sr(SGW,2)}, s[0:1], 72
s_load_dwordx2 {sr(SWS,2)}, s[0:1], 96
s_load_dwordx2 {sr(SWO,2)}, s[0:1], 64
s_load_dwordx2 {sr(SOUT,2)}, s[0:1], 80
v_lshrrev_b32 v4, 6, v0
v_and_b32 v{vL}, 63, v0
s_and_b32 s60, s2, 7
v_readfirstlane_b32 s{sW}, v4
s_lshr_b32 s61, s2, 3''')
    cpf = cfg.get('cpf', 0)
    if cpf:
        ng = 1
        while ng * 8 * cpf < 168: ng *= 2
        s(f'''v_mad_u32_u24 v5, v4, {cpf}, v{vL}
s_and_b32 s66, s61, {ng-1}
s_mul_i32 s66, s66, {8*cpf}
v_add_u32 v5, s66, v5
v_lshlrev_b32 v5, 7, v5
s_getpc_b64 s[64:65]
CPF_HERE:
s_sub_u32 s64, s64, CPF_HERE-{KN}
s_subb_u32 s65, s65, 0
v_min_u32 v5, K_LAST-{KN}, v5
v_mov_b32 v7, s65
v_add_co_u32 v6, vcc, s64, v5
v_addc_co_u32 v7, vcc, 0, v7, vcc
s_mov_b64 exec, {(1 << cpf) - 1}
global_load_dword v255, v[6:7], off
s_mov_b64 exec, -1''')
    s(f'''s_and_b32 s62, s61, 3
s_lshr_b32 s{sJ}, s61, 2
s_lshl_b32 s{sCL}, s60, 2
s_add_u32 s{sCL}, s{sCL}, s62
s_and_b32 s{sRB}, s{sCL}, 15
s_lshr_b32 s{sH}, s60, 2
s_lshl_b32 s{sH}, s{sH}, 3
s_add_u32 s{sH}, s{sH}, s{sJ}''')
    hm = cfg.get('hm')
    if hm:
        H_, Q_ = hm
        assert sorted(H_) == list(range(16)) and sorted(Q_) == list(range(16))
        pk = lambda L: sum(v << (4 * i) for i, v in enumerate(L))
        s(f'''s_lshl_b32 s62, s{sH}, 2
s_mov_b32 s64, {pk(H_) & 0xffffffff}
s_mov_b32 s65, {pk(H_) >> 32}
s_lshr_b64 s[64:65], s[64:65], s62
s_and_b32 s{sH}, s64, 15
s_mov_b32 s64, {pk(Q_) & 0xffffffff}
s_mov_b32 s65, {pk(Q_) >> 32}
s_lshr_b64 s[64:65], s[64:65], s62
s_and_b32 s{sHQ}, s64, 15''')
    else: s(f's_xor_b32 s{sHQ}, s{sH}, 1')
    s(f'''s_and_b32 s{sG}, s{sW}, 3
s_lshl_b32 s{sBETA}, s{sRB}, 2
s_add_u32 s{sBETA}, s{sBETA}, s{sG}
s_lshl_b32 s62, s{sRB}, 1
s_add_u32 s62, s62, s{sH}
s_mul_i32 s63, s62, 37
s_lshr_b32 s63, s63, 8
s_mul_i32 s63, s63, 7
s_sub_u32 s{sRHO}, s62, s63
s_mov_b32 s62, s{sRHO}''')
    chunk_sgprs(s, 0, 2)
    for r, n in ((SX, 2048*896), (SWQ, 448*2688)):
        s(f's_mov_b32 s{r+2}, {n}\ns_mov_b32 s{r+3}, 0x20000')
    s(f'''v_lshrrev_b32 v6, 3, v{vL}
v_and_b32 v7, 7, v{vL}
v_lshrrev_b32 v8, 4, v{vL}
v_xor_b32 v7, v7, v8
v_lshlrev_b32 v7, 4, v7
s_mov_b32 s63, 57344
v_mad_u32_u24 v{vX}, v6, s63, v7
s_lshr_b32 s64, s{sW}, 2
s_lshl_b32 s{sXM}, s{sG}, 12
s_lshl_b32 s60, s64, 11
s_add_u32 s{sXM}, s{sXM}, s60
s_mul_i32 s60, s{sBETA}, 896
s_mul_i32 s61, s64, {2*458752}
s_add_u32 s60, s60, s61
v_add_u32 v{vX}, s60, v{vX}
v_xor_b32 v{vX+1}, 64, v{vX}
v_add_u32 v{vX+1}, {458752-1024}, v{vX+1}
s_cmp_ge_u32 s{sW}, 4
s_cbranch_scc1 B_START''')

def code_touch(s, cpf, wreg, nw):
    ng = 1
    while ng * nw * cpf < 168: ng *= 2
    s(f'''s_lshr_b32 s66, s2, 3
s_and_b32 s66, s66, {ng-1}
s_mul_i32 s66, s66, {nw}
s_add_u32 s66, s66, s{wreg}
s_mul_i32 s66, s66, {cpf}
v_add_u32 v5, s66, v{vL}
v_lshlrev_b32 v5, 7, v5
s_getpc_b64 s[64:65]
CPF_HERE:
s_sub_u32 s64, s64, CPF_HERE-{KN}
s_subb_u32 s65, s65, 0
v_min_u32 v5, K_LAST-{KN}, v5
v_mov_b32 v9, s65
v_add_co_u32 v8, vcc, s64, v5
v_addc_co_u32 v9, vcc, 0, v9, vcc
s_mov_b64 exec, {(1 << cpf) - 1}''')
    s.vm('global_load_dword v255, v[8:9], off')
    s('s_mov_b64 exec, -1')

GATE_A = f'''s_mov_b32 s{SGW+2}, 896
s_mov_b32 s{SGW+3}, 0x20000
s_mul_i32 s60, s{sG}, 14
v_add_u32 v4, s60, v{vL}
v_lshrrev_b32 v5, 3, v4
v_add_u32 v5, s{sRHO}, v5
v_subrev_u32 v8, 7, v5
v_cmp_lt_u32 vcc, 6, v5
v_cndmask_b32 v5, v5, v8, vcc
v_and_b32 v8, 7, v4
v_lshlrev_b32 v8, 4, v8
v_lshl_add_u32 v121, v5, 7, v8'''
VGT = 116
def prologue_fast(s, b, cfg):
    s('s_cmp_ge_u32 s2, 256\ns_cbranch_scc1 K_END')
    s.stamp('start')
    s(f'''s_load_dwordx2 {sr(SX,2)}, s[0:1], 0
s_load_dwordx2 {sr(SWQ,2)}, s[0:1], 48
s_load_dwordx2 {sr(SGW,2)}, s[0:1], 72
v_lshrrev_b32 v4, 6, v0
v_and_b32 v{vL}, 63, v0
s_and_b32 s60, s2, 7
v_readfirstlane_b32 s{sW}, v4
s_lshr_b32 s61, s2, 3''')
    s(f'''s_and_b32 s62, s61, 3
s_lshr_b32 s{sJ}, s61, 2
s_lshl_b32 s{sCL}, s60, 2
s_add_u32 s{sCL}, s{sCL}, s62
s_and_b32 s{sRB}, s{sCL}, 15
s_lshr_b32 s{sH}, s60, 2
s_lshl_b32 s{sH}, s{sH}, 3
s_add_u32 s{sH}, s{sH}, s{sJ}''')
    hm = cfg.get('hm')
    if hm:
        H_, Q_ = hm
        assert sorted(H_) == list(range(16)) and sorted(Q_) == list(range(16))
        pk = lambda L: sum(v << (4 * i) for i, v in enumerate(L))
        s(f'''s_lshl_b32 s62, s{sH}, 2
s_mov_b32 s64, {pk(H_) & 0xffffffff}
s_mov_b32 s65, {pk(H_) >> 32}
s_lshr_b64 s[64:65], s[64:65], s62
s_and_b32 s{sH}, s64, 15
s_mov_b32 s64, {pk(Q_) & 0xffffffff}
s_mov_b32 s65, {pk(Q_) >> 32}
s_lshr_b64 s[64:65], s[64:65], s62
s_and_b32 s{sHQ}, s64, 15''')
    else: s(f's_xor_b32 s{sHQ}, s{sH}, 1')
    s(f'''s_and_b32 s{sG}, s{sW}, 3
s_lshl_b32 s{sBETA}, s{sRB}, 2
s_add_u32 s{sBETA}, s{sBETA}, s{sG}
s_lshl_b32 s62, s{sRB}, 1
s_add_u32 s62, s62, s{sH}
s_mul_i32 s63, s62, 37
s_lshr_b32 s63, s63, 8
s_mul_i32 s63, s63, 7
s_sub_u32 s{sRHO}, s62, s63
s_mov_b32 s62, s{sRHO}''')
    chunk_sgprs(s, 0, 1)
    s(f's_mov_b32 s{SX+2}, {2048*896}\ns_mov_b32 s{SX+3}, 0x20000')
    s(f'''v_lshrrev_b32 v6, 3, v{vL}
v_and_b32 v7, 7, v{vL}
v_lshrrev_b32 v8, 4, v{vL}
v_xor_b32 v7, v7, v8
v_lshlrev_b32 v7, 4, v7
s_mov_b32 s63, 57344
v_mad_u32_u24 v{vX}, v6, s63, v7
s_lshr_b32 s64, s{sW}, 2
s_lshl_b32 s{sXM}, s{sG}, 12
s_lshl_b32 s60, s64, 11
s_add_u32 s{sXM}, s{sXM}, s60
s_mul_i32 s60, s{sBETA}, 896
s_mul_i32 s61, s64, {2*458752}
s_add_u32 s60, s60, s61
v_add_u32 v{vX}, s60, v{vX}
v_xor_b32 v{vX+1}, 64, v{vX}
v_add_u32 v{vX+1}, {458752-1024}, v{vX+1}
s_mov_b32 m0, s{sXM}
s_waitcnt lgkmcnt(0)''')
    s.stamp('karg')
    s.run(xdma(0)[1:])
    s(f'''s_load_dwordx2 {sr(SWS,2)}, s[0:1], 96
s_load_dwordx2 {sr(SPHI,2)}, s[0:1], 56
s_load_dwordx2 {sr(SWO,2)}, s[0:1], 64
s_load_dwordx2 {sr(SOUT,2)}, s[0:1], 80
s_mov_b32 s{SWQ+2}, {448*2688}
s_mov_b32 s{SWQ+3}, 0x20000
s_cmp_lt_u32 s{sW}, 4
s_cbranch_scc1 A_START''')
    b.nvm = s.nvm; b.vt = dict(s.vt); b.stamps = list(s.stamps)
    b(GATE_A)
    b('s_mov_b64 exec, 0x3fff')
    b.vm(f'buffer_load_dwordx4 {vr(VGT,4)}, v121, {sr(SGW,4)}, 0 offen', 'gate')
    b('s_mov_b64 exec, -1')
    if cfg.get('cpf'): code_touch(b, cfg['cpf'], sG, 4)
    b('s_branch B_START')
    s('A_START:')

def wsrc_setup(s):
    s(f'''v_lshrrev_b32 v4, 2, v{vL}
v_and_b32 v5, 3, v{vL}
v_lshlrev_b32 v5, 4, v5
v_min_u32 v5, 40, v5
s_movk_i32 s63, 2688
v_mad_u32_u24 v{vWs}, v4, s63, v5
s_mul_i32 s60, s{sG}, 43008
s_mul_i32 s61, s{sH}, 56
s_add_u32 s60, s60, s61
s_add_u32 s60, s60, 896
v_add_u32 v{vWs}, s60, v{vWs}
s_lshl_b32 s{sWM}, s{sG}, 10''')

def prologue2(s):
    chunk_sgprs(s, 2, 7)
    for r, n in ((SPHI, 25088), (SWO, 401408), (SWS, WS_N), (SOUT, 2048*896)):
        s(f's_mov_b32 s{r+2}, {n}\ns_mov_b32 s{r+3}, 0x20000')
    s(f'''v_lshlrev_b32 v{v16}, 4, v{vL}
v_and_b32 v6, 31, v{vL}
v_lshrrev_b32 v7, 5, v{vL}
v_bfe_u32 v8, v{vL}, 1, 3
v_xor_b32 v8, v8, v7
v_lshlrev_b32 v8, 4, v8
v_lshl_add_u32 v{vXr}, v6, 7, v8
s_lshl_b32 s60, s{sG}, 12
v_add_u32 v{vXr}, s60, v{vXr}
v_xor_b32 v{vXr+1}, 32, v{vXr}
v_xor_b32 v{vXr+2}, 64, v{vXr}
v_xor_b32 v{vXr+3}, 0x60, v{vXr}
v_bfe_u32 v8, v{vL}, 4, 1
v_and_b32 v9, 3, v{vL}
v_lshl_add_u32 v8, v8, 2, v9
v_cmp_lt_u32 vcc, 5, v8
v_cndmask_b32 v8, v8, 7, vcc
v_lshlrev_b32 v8, 3, v8
v_bfe_u32 v9, v{vL}, 2, 2
v_lshl_add_u32 v8, v9, 6, v8
v_lshl_add_u32 v{vWr}, v7, 9, v8
s_mov_b32 s{sC}, {LOG2E}
s_mov_b32 s{sNC}, {LOG2E | 0x80000000}''')

def prefetch(s, role):
    if role == 'A':
        s(f'''s_lshr_b32 s61, s2, 3
v_lshrrev_b32 v30, 4, v{vL}
s_lshl_b32 s60, s{sJ}, 2
v_add_u32 v30, s60, v30
v_lshlrev_b32 v30, 6, v30
v_bfe_u32 v31, v{vL}, 2, 2
v_add_u32 v30, v30, v31
s_lshl_b32 s60, s{sRB}, 2
v_add_u32 v30, s60, v30
s_movk_i32 s60, 896
v_mul_u32_u24 v30, s60, v30
v_and_b32 v31, 3, v{vL}
v_lshl_add_u32 v30, v31, 7, v30
s_and_b32 s60, s{sW}, 1
s_lshl_b32 s60, s60, 9
s_mul_i32 s61, s61, 12544
s_lshl_b32 s63, s60, 4
s_add_u32 s61, s61, s63
v_lshlrev_b32 v31, 7, v{vL}
s_cmp_ge_u32 s{sW}, 2
s_cbranch_scc1 PFA_O
buffer_load_dword v96, v30, {sr(SX,4)}, s60 offen
s_branch PFA_E
PFA_O:
buffer_load_dword v96, v31, {sr(SWO,4)}, s61 offen
PFA_E:''')
    else:
        s(f'''s_lshr_b32 s61, s2, 3
s_mul_i32 s61, s61, {14*2688}
s_lshr_b32 s60, s{sH}, 3
s_mul_i32 s60, s60, 384
s_add_u32 s61, s61, s60
s_mul_i32 s60, s{sG}, 896
s_add_u32 s61, s61, s60
v_lshrrev_b32 v30, 2, v{vL}
s_movk_i32 s60, 2688
v_mul_u32_u24 v30, s60, v30
v_and_b32 v31, 3, v{vL}
v_lshl_add_u32 v30, v31, 7, v30
buffer_load_dword v250, v30, {sr(SWQ,4)}, s61 offen''')
    s.nvm += 1; s.vt['pf'] = s.nvm

def uaddr(va, s0, s1):
    return f'''v_and_b32 v9, 15, v{vL}
v_lshlrev_b32 v{va}, 4, v9
v_bfe_u32 v9, v{vL}, 4, 1
v_lshl_add_u32 v{va}, v9, 20, v{va}
v_lshl_add_u32 v{va}, v7, 17, v{va}
s_lshl_b32 s{s0}, s{sG}, 18
s_lshl_b32 s{s1}, s{sRB}, 12
s_add_u32 s{s0}, s{s0}, s{s1}
s_lshl_b32 s{s1}, s{sH}, 8
s_add_u32 s{s0}, s{s0}, s{s1}
s_add_u32 s{s0}, s{s0}, {WS_U}
s_add_u32 s{s1}, s{s0}, 65536'''.split('\n')

def xreads(i):
    sl = i % 5
    return [('ds', f'ds_read_b128 {vr(XF+16*i+4*k,4)}, v{vXr+k} offset:{16384*sl}' if sl < 4 else f'ds_read_b128 {vr(XF+16*i+4*k,4)}, v{24+k}', f'xf{4*i+k}')
            for k in range(4)]

def chunk_loop(s, cfg, rd, fk, mf, items, pre, post):
    for i in range(7):
        t = [x for x in pre(i) if x in s.vt]
        lazy = cfg.get('lazy', 0)
        dt = ('all' if i else None) if not lazy else (f'dfw{i}' if f'dfw{i}' in s.dt else None)
        s.wait(vtag=max(t, key=lambda x: s.vt[x]) if t else None, dtag=dt)
        s.stamp(f'W{i}')
        s.run(items(f'w{i}'))
        s('s_barrier')
        s.stamp(f'B{i}')
        xr = xreads(i)
        reads = [[xr[k]] + rd(4 * i + k) for k in range(4)]
        dm = items(f'b{i}')
        if i == 0: s.run(reads); s.run(post(i)); s.run(dm)
        else:
            mf_ = mf
            if lazy: mf = lambda sl: [('wl', f'{fk}{sl}'), mf_(sl)]
            seq = [[mf(4 * (i - 1))], reads[0], reads[1], [mf(4 * (i - 1) + 1)], reads[2], reads[3], [mf(4 * (i - 1) + 2)], post(i)]
            if cfg.get('il', 0):
                one = []; cur = []
                for d in dm:
                    for x in d:
                        cur.append(x)
                        if isinstance(x, tuple) and x[0] == 'vm': one.append(cur); cur = []
                assert not cur
                po = post(i); n = len(one); m = len(po)
                seq = []
                rs = [reads[0] + reads[1], reads[2] + reads[3], [], []] if cfg['il'] == 1 else reads
                for k in range(4):
                    pf = cfg.get('pofirst', 3)
                    if pf == 3: seq += [[mf(4 * (i - 1) + k)], rs[k], one[k * n // 4:(k + 1) * n // 4], po if k == 3 else []]
                    else: seq += [[mf(4 * (i - 1) + k)], rs[k], po if k == pf else [], one[k * n // 4:(k + 1) * n // 4]]
            elif cfg.get('dma_mid', 1): seq += [dm[:len(dm)//2], [mf(4 * (i - 1) + 3)], dm[len(dm)//2:]]
            else: seq += [[mf(4 * (i - 1) + 3)], dm]
            s.run(seq)
            mf = mf_
    for k in range(4):
        s.wait(dtag=f'{fk}{24+k}')
        s(mf(24 + k))

def wread(kind, sl):
    r = RING + 4 * (sl % 8)
    if kind == 'k': b, o = vWr, 1024 * sl
    elif kind == 'q': b, o = vWr2, 1024 * sl
    else: b, o = (vWr, 1024 * sl) if sl < 20 else (vWr2, 1024 * (sl - 20))
    return [('ds', f'ds_read_b64_tr_b16 {vr(r,2)}, v{b} offset:{o}'), ('ds', f'ds_read_b64_tr_b16 {vr(r+2,2)}, v{b} offset:{o+256}', f'{kind}f{sl}')]

def gemm_groups(kind, lo, hi, acc, pre=4):
    g = []; head = []
    for sl in range(lo, min(lo + pre, hi)): head += wread(kind, sl)
    for sl in range(lo, hi):
        it = []
        if sl == lo: it += head
        it.append(('wl', f'{kind}f{sl}'))
        it.append(mf32(vr(acc,16), vr(RING+4*(sl%8),4), vr(XF+4*sl,4), vr(acc,16) if sl else '0'))
        if sl + pre < hi: it += wread(kind, sl + pre)
        g.append(it)
    return g

SELRT = [0]
def gather(s, nm, n, reg, vaddr, soff, work, tail, cnt=400, width=4, ldf=None, mask=False, xld=()):
    op = {4: 'buffer_load_dwordx4', 2: 'buffer_load_dwordx2'}[width]
    def rg(p): return vr(reg + width * p, width)
    def ld(p):
        if ldf: return ldf(p)
        return [f'{op} {rg(p)}, v{vaddr}, {sr(SWS,4)}, {soff(p)} sc1']
    def chk(p):
        if width == 4:
            return [f'v_cmp_ne_u32_sdwa vcc, v{reg+4*p+3}, s{sTAG} src0_sel:WORD_1 src1_sel:WORD_1'] + \
                   ([f'v_and_b32 v{reg+4*p+3}, 0xffff, v{reg+4*p+3}'] if mask else []) + [f's_cbranch_vccnz {nm}_RT{p}']
        return [f'v_cmp_ne_u32 vcc, s{sTAG}, v{reg+2*p+1}', f's_cbranch_vccnz {nm}_RT{p}']
    s(f's_movk_i32 s67, {cnt}')
    if SELRT[0]:
        def cmp(p): return chk(p)[0]
        for p in range(n):
            s(f'{nm}_CK{p}:')
            s.vdone = 0
            s.wait(vtag=f'{nm}{p}')
            s.run(chk(p)); s(f'{nm}_OK{p}:')
            if p == 0: s.stamp(nm + '0')
            s.run(work(p))
            tail += [f'{nm}_RT{p}:', f's_movk_i32 s68, {p}', 's_sub_u32 s67, s67, 1', 's_cmp_eq_u32 s67, 0', f's_cbranch_scc1 {nm}_GU{p}',
                     's_waitcnt vmcnt(0)', f's_branch {nm}_CH{p}', f'{nm}_GU{p}:', 's_movk_i32 s67, 1', 's_waitcnt vmcnt(0)', f's_branch {nm}_OK{p}']
        for q in range(n):
            tail += [('raw', x) for x in [f'{nm}_CH{q}:', cmp(q), 's_nop 1', f's_cbranch_vccz {nm}_CH{q+1}'] + ld(q)]
        tail += [('raw', f'{nm}_CH{n}:')] + list(xld) + ['s_waitcnt vmcnt(0)']
        for p in range(n - 1): tail += [f's_cmp_eq_u32 s68, {p}', f's_cbranch_scc1 {nm}_CK{p}']
        tail += [f's_branch {nm}_CK{n-1}']
        return
    extra = s.nvm - s.vt[f'{nm}{n-1}']
    two = extra > 0
    R = 'R' if two else ''
    for p in range(n):
        s(f'{nm}_CK{p}:')
        s.vdone = 0
        s.wait(vtag=f'{nm}{p}')
        s.run(chk(p)); s(f'{nm}_OK{p}:')
        if p == 0: s.stamp(nm + '0')
        w = work(p)
        s.run(w)
        t = [f'{nm}_RT{p}:', 's_sub_u32 s67, s67, 1', 's_cmp_eq_u32 s67, 0', f's_cbranch_scc1 {nm}_GU{p}', 's_waitcnt vmcnt(0)']
        for q in range(p, n): t += ld(q)
        t += [f's_branch {nm}_{R}CK{p}', f'{nm}_GU{p}:', 's_movk_i32 s67, 1', 's_waitcnt vmcnt(0)', f's_branch {nm}_{R}OK{p}']
        tail += t
    if two:
        s(f'{nm}_JOIN:')
        for p in range(n):
            w = work(p)
            assert all(isinstance(x, str) for x in w)
            tail += [f'{nm}_RCK{p}:', f's_waitcnt vmcnt({sum(len(ld(q)) for q in range(p + 1, n))})'] + chk(p) + [f'{nm}_ROK{p}:'] + w
        tail.append(f's_branch {nm}_JOIN')

def final_setup(kh):
    T2 = 96
    it = f'''s_lshr_b32 s60, s{sG}, 1
s_lshl_b32 s60, s60, 5
s_add_u32 s60, s60, s{sCL}
s_and_b32 s61, s{sG}, 1
s_lshl_b32 s62, s61, 10
s_add_u32 s63, s62, s60
v_and_b32 v4, 15, v{vL}
v_lshrrev_b32 v5, 4, v{vL}
v_lshl_add_u32 v6, v4, 6, s63
v_cvt_f32_u32 v7, v6
v_mul_f32 v7, {f2h(1/2048)}, v7
v_lshl_add_u32 v8, v5, 2, {32*kh}
v_cvt_f32_u32 v8, v8
v_mul_f32 v8, v8, v7
s_cmp_ge_u32 s{sJ}, 4
s_cselect_b32 s64, 0x80000000, 0
s_cmp_ge_u32 s{sJ}, 3
s_cselect_b32 s65, 0x80000000, 0
s_movk_i32 s66, 896
v_mul_u32_u24 v15, s66, v6
v_and_b32 v6, 1, v5
v_lshl_add_u32 v15, v6, 5, v15
v_lshrrev_b32 v6, 1, v5
v_lshl_add_u32 v15, v6, 4, v15
s_lshl_b32 s66, s{sJ}, 7
s_add_u32 s66, s66, {64*kh}
v_add_u32 v15, s66, v15
s_lshl_b32 s60, s60, 1
s_add_u32 s60, s60, s61
s_lshl_b32 s66, s60, 7
s_add_u32 s66, s66, {WS_G}
v_lshl_add_u32 v29, v4, 3, s66
s_lshl_b32 s60, s60, 14
s_add_u32 s60, s60, {WS_O+8192*kh}
v_add_u32 v14, s60, v{v16}
v_lshlrev_b32 v23, 4, v4
v_lshl_add_u32 v23, v5, 10, v23
v_add_u32 v23, {L_UT+8192*kh}, v23'''.split('\n')
    for u in range(2):
        for jj in range(4):
            r = T2 + 4 * u + jj
            it += [f'v_fmamk_f32 v9, v7, {f2h(16*u+jj)}, v8' if (u or jj) else 'v_mov_b32 v9, v8', 'v_cos_f32 v6, v9', 'v_sin_f32 v9, v9',
                   f'v_cvt_pk_bf16_f32 v{r}, v6, v9', f'v_xor_b32 v{r+8}, s65, v{r}', f'v_xor_b32 v{r}, s64, v{r}']
    it += f'''v_bfe_u32 v6, v{vL}, 2, 2
v_mad_u32_u24 v6, v5, 7, v6
v_bfe_u32 v7, v{vL}, 3, 2
v_bfe_u32 v8, v{vL}, 1, 1
v_lshl_or_b32 v8, v7, 1, v8
v_lshlrev_b32 v8, 4, v8
v_lshl_add_u32 v8, v6, 7, v8
v_and_b32 v7, 1, v{vL}
v_lshl_add_u32 v8, v7, 3, v8
v_add_u32 v24, {L_WO + 128*224*kh}, v8
v_xor_b32 v25, 32, v24
v_xor_b32 v26, 64, v24
v_xor_b32 v27, 0x60, v24
s_lshl_b32 s60, s{sW}, 11
v_add_u32 v28, s60, v{v16}
v_xor_b32 v30, 0x2000, v28'''.split('\n')
    return it

def wo_reads():
    it = []
    for j in range(8):
        for ct in range(4):
            r = XF + 16 * j + 4 * ct
            for u in range(2):
                it.append(('ds', f'ds_read_b64_tr_b16 {vr(r+2*u,2)}, v{24 + ct} offset:{128*(28*j+4*u)}', f'wo{j}_{ct}'))
    return it

OG = 32
def osoff(p): return ['0', 's60'][p >> 2] + ' offen' + (f' offset:{1024*(p&3)}' if p & 3 else '')
def old(p): return [f'buffer_load_dwordx4 {vr(OG+4*p,4)}, v14, {sr(SWS,4)}, {osoff(p)} sc1']
def o_issue(s, nm):
    s('s_movk_i32 s60, 4096')
    for p in range(8):
        for x in old(p): s.vm(x, f'{nm}{p}')
def g_issue(s, nm): s.vm(f'buffer_load_dwordx2 v[20:21], v29, {sr(SWS,4)}, 0 offen sc1', f'{nm}0')

def final_stage(s, kh, cfg, tail):
    nm = 'OA' if kh == 0 else 'OB'
    UF, T2, ACC = 64, 96, 112
    s.stamp('Bu')
    for u in range(2):
        for ct in range(4):
            s.ds(f'ds_read_b128 {vr(UF+16*u+4*ct,4)}, v23 offset:{4096*u+256*ct}', f'uf{u}{ct}')
    if f'{nm}0' not in s.vt and cfg.get('oiss', 1) == 1: o_issue(s, nm)
    if cfg.get('wo_at', 'Bs') == 'Bu': s.run(wo_reads())
    for u in range(2):
        for ct in range(4):
            s.wait(dtag=f'uf{u}{ct}')
            s(mf16(vr(ACC+4*ct,4), vr(UF+16*u+4*ct,4), vr(T2+8*(ct>>1)+4*u,4), vr(ACC+4*ct,4) if u else '0'))
    if cfg.get('oack') == 2:
        if kh == 0: s.wait(vtag='ost1'); s.stamp('oack')
        s('s_barrier')
    if f'{nm}0' not in s.vt: o_issue(s, nm)
    if cfg.get('glate'): gather(s, 'GA' if kh == 0 else 'GB', 1, 20, 29, lambda p: '0 offen', lambda p: [], tail, width=2)
    for r in range(16): s(f'v_mul_f32 v{ACC+r}, v{ACC+r}, v20')
    s.wait(dtag='all')
    s.stamp('Y')
    give = (2, 3) if kh == 0 else (0, 1)
    keep = (0, 1) if kh == 0 else (2, 3)
    def work(p):
        return [mf16(vr(ACC+4*ct,4), vr(XF+16*p+4*ct,4), vr(OG+4*p,4), vr(ACC+4*ct,4)) for ct in give + keep]
    gather(s, nm, 8, OG, 14, osoff, work, tail, ldf=old, mask=True)
    s.stamp('og')
    for k, ct in enumerate(give): s.ds(f'ds_write_b128 v28, {vr(ACC+4*ct,4)} offset:{L_RX+1024*k}')
    s.wait(dtag='all'); s('s_barrier')
    for k in range(2): s.ds(f'ds_read_b128 {vr(UF+4*k,4)}, v30 offset:{L_RX+1024*k}', f'rx{k}')
    for k, ct in enumerate(keep):
        s.wait(dtag=f'rx{k}')
        for r in range(4): s(f'v_add_f32 v{ACC+4*ct+r}, v{ACC+4*ct+r}, v{UF+4*k+r}')
        s(f'v_cvt_pk_bf16_f32 v{OG+2*k}, v{ACC+4*ct}, v{ACC+4*ct+1}\nv_cvt_pk_bf16_f32 v{OG+2*k+1}, v{ACC+4*ct+2}, v{ACC+4*ct+3}')
    s(f'v_permlane16_swap_b32 v{OG}, v{OG+2}\nv_permlane16_swap_b32 v{OG+1}, v{OG+3}')
    s.vm(f'buffer_store_dwordx4 {vr(OG,4)}, v15, {sr(SOUT,4)}, 0 offen')
    s.stamp('end')

def wosrc(vWo):
    return f'''v_lshrrev_b32 v4, 3, v{vL}
v_and_b32 v5, 7, v{vL}
v_and_b32 v8, 2, v4
v_xor_b32 v5, v5, v8
v_lshlrev_b32 v5, 4, v5
s_movk_i32 s60, 896
v_mad_u32_u24 v{vWo}, v4, s60, v5
v_xor_b32 v5, 64, v{vWo}
v_add_u32 v{vWo+1}, 5376, v5
v_add_u32 v{vWo+2}, {2*5376}, v{vWo}
v_add_u32 v{vWo+3}, {3*5376}, v5
s_mul_i32 s38, s{sG}, {112*896}
s_lshl_b32 s60, s{sJ}, 7
s_add_u32 s38, s38, s60
s_mul_i32 s39, s{sG}, {112*128}
s_add_u32 s39, s39, {L_WO}'''.split('\n')
def wodma(k, vWo):
    it = [f's_add_u32 m0, s39, {3584*k}', f's_add_u32 s61, s38, {28*896*k}', 's_mov_b32 exec_hi, 0xffffff']
    for u in range(4):
        it.append(('vm', f'buffer_load_dwordx4 v{vWo+u}, {sr(SWO,4)}, s61 offen offset:{896*u} lds', f'wo{k}'))
    return it + ['s_mov_b32 exec_hi, -1']

def lastw(s, tags):
    t = [x for x in tags if x in s.vt]
    if t: s.wait(vtag=max(t, key=lambda x: s.vt[x]))

def gen_A(s, cfg, plan):
    ACC, P, EM, PH, WF, T = 64, 80, 96, 112, 248, 24
    KB = EM
    vPW, vPR, vVR, vPS, vOS = 240, 244, 245, 247, 2
    def M1(pt): return P if pt.startswith('pre') or pt[0] in 'wb' else 120
    vWv = 15
    tail = []
    clrb = cfg.get('clrb', 'v1')
    def items(pt):
        out = []
        for it in plan.get(pt, []):
            if it[0] == 'x': out.append(xdma(int(it[1])))
            elif it[0] == 'X':
                d = xdma(int(it[1]), 1); out.append(d[:3]); out.append(d[3:])
            elif it[0] == 'k': out.append(wdma('k', int(it[1]), vWs))
            elif it[0] == 'v': out.append(wdma('v', int(it[1]), vWv))
            elif it[0] == 'q': out.append(wdma('q', int(it[1]), 14))
            elif it == 'phi':
                out.append([f's_add_u32 m0, s{sWM}, {L_PHI}', ('vm', f'buffer_load_dwordx4 v{vPhi}, {sr(SPHI,4)}, 0 offen lds', 'phi')])
            elif it == 'pf': out.append([('fn', lambda: prefetch(s, 'A'))])
            elif it == 'tg': out.append(['s_waitcnt lgkmcnt(0)'] + TAGC)
            elif it == 'osrc': out.append(wosrc(64))
            elif it[0] == 'o': out.append(wodma(int(it[1]), 64))
            elif it == 'tlb':
                out.append([f's_load_dword s66, {sr(SWS,2)}, 0', f's_mov_b32 s60, {WS_U}', f's_load_dword s66, {sr(SWS,2)}, s60',
                            f's_mov_b32 s60, {WS_P}', f's_load_dword s66, {sr(SWS,2)}, s60', f's_load_dword s66, {sr(SOUT,2)}, 0'])
            else: raise ValueError(it)
        return out
    def do(pt): s.run(items(pt))
    def flag(): return []
    s(f's_setprio {cfg.get("prioA", 2)}')
    wsrc_setup(s)
    fast = cfg.get('fast0')
    if fast:
        s.run(wdma('k', 0, vWs)); chunk_sgprs(s, 1, 2)
    s(f'v_add_u32 v28, {2*458752}, v{vX}\nv_add_u32 v29, {2*458752}, v{vX+1}')
    if fast: do('pre0')
    s(f'''v_lshlrev_b32 v{v16}, 4, v{vL}
s_lshl_b32 s64, s{sH}, 2
s_add_u32 s64, s64, s{sG}
s_lshl_b32 s64, s64, 4
s_add_u32 s64, s64, s{sRB}
s_lshl_b32 s64, s64, 10
s_add_u32 s64, s64, {WS_P}
s_mov_b32 s{SWS+2}, {WS_N}
s_mov_b32 s{SWS+3}, 0x20000
s_mov_b32 s{sTAG+1}, {WS_F+0x1000}''')
    s('s_waitcnt lgkmcnt(0)')
    if not fast:
        s.stamp('karg')
        do('pre0')
    s(f's_load_dword s{sTAG}, {sr(SWS,2)}, s{sTAG+1}')
    prologue2(s)
    s(f'''s_and_b32 s60, s{sG}, 1
s_lshl_b32 s60, s60, 4
v_add_u32 v9, s60, v4
s_cmp_lt_u32 s{sG}, 2
s_cselect_b32 s61, s{sH}, s{sHQ}
s_mul_i32 s61, s61, 1568
v_mad_u32_u24 v{vPhi}, v9, 56, v5
v_add_u32 v{vPhi}, s61, v{vPhi}
v_cmp_lt_u32 vcc, 27, v9
v_bfrev_b32 v9, 1
v_cndmask_b32 v{vPhi}, v{vPhi}, v9, vcc''')
    do('pre1')
    s(f'''v_lshl_add_u32 v{vPr}, v7, 8, v8
v_add_u32 v{vPr}, {L_PHI}, v{vPr}
v_add_u32 v{vWr2}, {L_WQ}, v{vWr}
v_add_u32 v{vWr}, {L_WK}, v{vWr}
v_add_u32 v{vWv}, 896, v{vWs}
s_sub_u32 s60, s{sHQ}, s{sH}
s_mul_i32 s60, s60, 56
s_sub_u32 s60, s60, 896
v_add_u32 v14, s60, v{vWs}
v_add_u32 v{vPS}, s64, v{v16}''')
    s(f'''v_and_b32 v9, 15, v{vL}
v_lshlrev_b32 v9, 4, v9
v_lshl_add_u32 v9, v7, 8, v9
v_lshrrev_b32 v4, 4, v6
v_lshl_add_u32 v9, v4, 14, v9
s_lshl_b32 s60, s{sBETA}, 15
s_lshl_b32 s61, s{sHQ}, 10
s_add_u32 s60, s60, s61
v_add_u32 v{vOS}, s60, v9
v_and_b32 v4, 7, v{vL}
v_xor_b32 v4, v4, v7
v_lshlrev_b32 v4, 4, v4
v_lshl_add_u32 v4, v6, 7, v4
s_lshl_b32 s60, s{sG}, 12
v_add_u32 v{vPW}, s60, v4
v_xor_b32 v{vPW+1}, 32, v{vPW}
v_xor_b32 v{vPW+2}, 64, v{vPW}
v_xor_b32 v{vPW+3}, 0x60, v{vPW}
v_lshrrev_b32 v4, 2, v{vL}
v_and_b32 v5, 7, v4
v_bfe_u32 v9, v{vL}, 1, 1
s_lshl_b32 s60, s{sG}, 1
v_or_b32 v9, s60, v9
v_xor_b32 v9, v9, v5
v_lshlrev_b32 v9, 4, v9
v_lshl_add_u32 v9, v4, 7, v9
v_and_b32 v8, 1, v{vL}
v_lshl_add_u32 v{vPR}, v8, 3, v9
v_lshrrev_b32 v5, 1, v5
v_xor_b32 v5, v5, v8
v_lshlrev_b32 v5, 4, v5
v_lshl_add_u32 v5, v4, 6, v5
v_bfe_u32 v9, v{vL}, 1, 1
v_lshl_add_u32 v5, v9, 3, v5
v_add_u32 v{vVR}, {L_V}, v5
v_xor_b32 v{vVR+1}, 32, v{vVR}''')
    for k in range(4): s(f'v_add_u32 v{24+k}, 0x10000, v{vXr+k}')
    do('pre2')
    phib = cfg.get('phib', 2)
    def pre(i): return [f'x{i}', f'wk{i}'] + (['phi'] if i == phib else []) + (['clr'] if i == clrb else []) + (['pf'] if i == 6 else [])
    def post(i):
        it = []
        if i == phib: it += [('ds', f'ds_read_b64_tr_b16 {vr(WF+2*j,2)}, v{vPr} offset:{512*j}', 'phik') for j in range(4)]
        if i == clrb: it += flag()
        return it
    chunk_loop(s, cfg, lambda sl: wread('k', sl), 'kf', lambda sl: mf32(vr(ACC,16), vr(RING+4*(sl%8),4), vr(XF+4*sl,4), vr(ACC,16) if sl else '0'),
               items, pre, post)
    s.stamp('kdone')
    do('kd')
    s('s_mov_b32 vcc_lo, 0\ns_mov_b32 vcc_hi, -1')
    for j in range(8): s(f'v_cvt_pk_bf16_f32 v{KB+j}, v{ACC+2*j}, v{ACC+2*j+1}')
    s(mf32(vr(P,16), vr(WF,4), vr(KB,4), '0'))
    s(mf32(vr(P,16), vr(WF+4,4), vr(KB+4,4), vr(P,16)))
    do('pk')
    nv1 = cfg.get('nv1', 7)
    smi = items('sm'); sm0, smd = cfg.get('sm0', 2), cfg.get('smd', 8)
    for n, it in enumerate(softmax_items(P, EM, PH, T)):
        if smi and n >= sm0 and (n - sm0) % smd == 0: s.run(smi.pop(0))
        if n == cfg.get('bv1_at', 0):
            lastw(s, [f'wv{i}' for i in range(nv1)] + (['clr'] if clrb == 'v1' else [])); s('s_barrier')
            s.stamp('Bv1')
            if clrb == 'v1': s.run(flag())
        if nv1 < 7 and n == cfg.get('bv2_at', 90):
            s.stamp('vm0'); lastw(s, [f'wv{i}' for i in range(7)]); s.stamp('vm2'); s('s_barrier')
            s.stamp('Bv2')
        s(it)
        for ks in range(4):
            last = 4 * ks + 3
            if it.startswith(f'v_cvt_pk_bf16_f32 v{PH+last},'):
                assert n > cfg.get('bv1_at', 0)
                s.ds(f'ds_write_b128 v{vPW+ks}, {vr(PH+4*ks,4)}')
    assert not smi
    s.stamp('smk')
    bp = cfg.get('bp', 0)
    if not bp: lastw(s, [f'wq{i}' for i in range(7)])
    s.wait(dtag='all'); s('s_barrier')
    s.stamp('Bkv')
    AF, BF, KV = RING, RING + 16, P
    for gp in range(4):
        s.ds(f'ds_read_b64_tr_b16 {vr(AF+4*gp,2)}, v{vPR} offset:{4096*gp}')
        s.ds(f'ds_read_b64_tr_b16 {vr(AF+4*gp+2,2)}, v{vPR} offset:{4096*gp+2048}')
        for t in range(2):
            s.ds(f'ds_read_b64_tr_b16 {vr(BF+8*gp+4*t,2)}, v{vVR+t} offset:{2048*gp}')
            s.ds(f'ds_read_b64_tr_b16 {vr(BF+8*gp+4*t+2,2)}, v{vVR+t} offset:{2048*gp+1024}', f'kv{gp}{t}')
    for gp in range(4):
        for t in range(2):
            s.wait(dtag=f'kv{gp}{t}')
            s(mf16(vr(KV+4*t,4), vr(AF+4*gp,4), vr(BF+8*gp+4*t,4), vr(KV+4*t,4) if gp else '0'))
    qg = gemm_groups('q', 0, 28, ACC)
    if not bp:
        head = qg[0][:8]; qg[0] = qg[0][8:]
        s.run(head)
    for j in range(4): s(f'v_cvt_pk_bf16_f32 v{KV+8+j}, v{KV+2*j}, v{KV+2*j+1}')
    s(f'v_permlane16_swap_b32 v{KV+9}, v{KV+11}\nv_permlane16_swap_b32 v{KV+8}, v{KV+10}\nv_and_b32 v{KV+11}, 0xffff, v{KV+11}\nv_or_b32 v{KV+11}, s{sTH}, v{KV+11}')
    s.vm(f'buffer_store_dwordx4 {vr(KV+8,4)}, v{vPS}, {sr(SWS,4)}, 0 offen sc1', 'pub')
    s.stamp('pub')
    if 'pA1' in cfg: s(f's_setprio {cfg["pA1"]}')
    do('pub')
    if bp:
        lastw(s, [f'wq{i}' for i in range(7)]); s('s_barrier'); s.stamp('Bp')
    fill = items('p0') + items('p1')
    fill += [('ds', f'ds_read_b64_tr_b16 {vr(WF+2*j,2)}, v{vPr} offset:{2048+512*j}', 'phiq') for j in range(4)]
    fill += f'''v_and_b32 v4, 31, v{vL}
v_lshlrev_b32 v4, 2, v4
s_lshl_b32 s60, s{sG}, 7
s_add_u32 s60, s60, {L_GX}
v_add_u32 v12, s60, v4
s_lshl_b32 s60, s{sBETA}, 8
s_add_u32 s60, s60, {WS_G}
s_cmp_eq_u32 s{sH}, 0
s_cselect_b32 s60, s60, 0x7ffff000
v_lshl_add_u32 v11, v4, 1, s60
v_bfe_u32 v4, v{vL}, 4, 1
v_bfe_u32 v5, v{vL}, 2, 1
v_lshl_add_u32 v4, v4, 1, v5
v_bfe_u32 v5, v{vL}, 3, 1
v_and_b32 v6, 3, v{vL}
v_lshl_add_u32 v5, v5, 2, v6
v_mad_u32_u24 v4, v4, 7, v5
v_cmp_eq_u32 vcc, 7, v5
v_cndmask_b32 v4, v4, 28, vcc
v_lshrrev_b32 v5, 5, v{vL}
v_lshl_add_u32 v4, v5, 5, v4
v_lshlrev_b32 v4, 4, v4
v_add_u32 v13, {L_KX}, v4'''.split('\n')
    fs = final_setup(0)
    if cfg.get('fsA_q', 1): fill += fs
    bq = cfg.get('bq_at', 27)
    qg[bq] = qg[bq] + [('st', 'Bq'), ('ds', 'ds_read_b32 v31, v12', 'gx')]
    s.run(spread(qg, fill, 2, 26))
    KB = RING
    s('s_mov_b32 vcc_lo, 0\ns_mov_b32 vcc_hi, -1')
    for j in range(8): s(f'v_cvt_pk_bf16_f32 v{KB+j}, v{ACC+2*j}, v{ACC+2*j+1}')
    s(mf32(vr(P,16), vr(WF,4), vr(KB,4), '0'))
    s(mf32(vr(P,16), vr(WF+4,4), vr(KB+4,4), vr(P,16)))
    s.wait(dtag='gx')
    s(f'v_mul_f32 v31, s{sC}, v31\nv_exp_f32 v31, v31\nv_add_f32 v31, 1.0, v31\nv_rcp_f32 v31, v31\nv_sub_f32 v4, 1.0, v31\nv_mov_b32 v5, s{sTAG}\ns_mov_b32 exec_hi, 0')
    s.vm(f'buffer_store_dwordx2 v[4:5], v11, {sr(SWS,4)}, 0 offen sc1')
    s('s_mov_b32 exec_hi, -1')
    s.run(softmax_items(P, 64, PH, 16))
    s.stamp('smq')
    if 'pA1' in cfg: s(f's_setprio {cfg.get("prioA", 2)}')
    if not cfg.get('fsA_q', 1): s.run(fs)
    do('smq')
    wol = cfg.get('wo_at', 'Bs') == 'Bu'
    if not wol: lastw(s, [f'wo{i}' for i in range(4)])
    s('s_barrier')
    s.stamp('Bs')
    for ks in range(4): s.ds(f'ds_read_b128 {vr(RING+4*ks,4)}, v13 offset:{1024*ks}', f'kx{ks}')
    for ks in range(4):
        s.wait(dtag=f'kx{ks}')
        s(mf32(vr(P,16), vr(RING+4*ks,4), vr(PH+4*ks,4), vr(P,16) if ks else '0'))
    OP = RING + 16
    s(f'''v_add_f32 v6, {f2h(1e-6)}, v{P+7}
v_rcp_f32 v6, v6
v_mul_f32 v6, v6, v31''')
    for q in range(2):
        for r in range(8 * q, 8 * q + 7): s(f'v_mul_f32 v{P+r}, v{P+r}, v6')
        for j in range(4 * q, 4 * q + 4): s(f'v_cvt_pk_bf16_f32 v{OP+j}, v{P+2*j}, ' + (f'v{P+2*j+1}' if j & 3 != 3 else f's{sTH}'))
        s.vm(f'buffer_store_dwordx4 {vr(OP+4*q,4)}, v{vOS}, {sr(SWS,4)}, 0 offen offset:{512*q} sc1', f'ost{q}')
    s.stamp('ost')
    s(f's_setprio {cfg.get("prioA2", 0)}\ns_cmp_ge_u32 s{sJ}, 7\ns_cbranch_scc1 A_FIN')
    do('ost')
    wr = [] if wol else wo_reads()
    nw = cfg.get('woA_pre', 64)
    s.run(wr[:nw])
    g_issue(s, 'GA')
    if cfg.get('oissA', 0) == -1: o_issue(s, 'OA')
    s.run(wr[nw:])
    if cfg.get('oissA', 0) == 0: o_issue(s, 'OA')
    if not cfg.get('glate'): gather(s, 'GA', 1, 20, 29, lambda p: '0 offen', lambda p: [], tail, width=2)
    if wol: s.vdone = 0; lastw(s, [f'wo{i}' for i in range(4)])
    if cfg.get('oack') == 1: s.wait(vtag='ost1'); s.stamp('oack')
    if cfg.get('oack') == 3: s.wait(vtag='ost0'); s.stamp('oack')
    s('s_barrier')
    final_stage(s, 0, cfg, tail)
    s('A_FIN:')
    stamp_store(s)
    s('s_endpgm')
    s.run(tail)

def gen_B(s, cfg, plan):
    AD, AV, T1 = 64, 80, 96
    vWv, vWq, vWo = 15, 14, 112
    vDr, vVW, vGt = 22, 30, 116
    tail = []
    def items(pt):
        out = []
        for it in plan.get(pt, []):
            if it[0] == 'x': out.append(xdma(int(it[1])))
            elif it[0] == 'X':
                d = xdma(int(it[1]), -1); out.append(d[:3]); out.append(d[3:])
            elif it[0] == 'k': out.append(wdma('k', int(it[1]), vWs))
            elif it[0] == 'v': out.append(wdma('v', int(it[1]), vWv))
            elif it[0] == 'q': out.append(wdma('q', int(it[1]), vWq))
            elif it == 'osrc': out.append(wosrc(vWo))
            elif it[0] == 'o': out.append(wodma(int(it[1]), vWo))
            elif it == 'pf': out.append([('fn', lambda: prefetch(s, 'B'))])
            elif it == 'pw':
                out.append(['s_lshr_b32 s60, s2, 3', 's_lshl_b32 s60, s60, 2', f's_add_u32 s60, s60, s{sG}', f's_mul_i32 s60, s60, {25*128}', f'v_lshlrev_b32 v126, 7, v{vL}',
                            's_mov_b32 exec_hi, 0', 's_mov_b32 exec_lo, 0x1ffffff', ('vm', f'buffer_load_dword v126, v126, {sr(SWO,4)}, s60 offen', 'pw'), 's_mov_b64 exec, -1'])
            elif it == 'gate':
                out.append(['s_mov_b64 exec, 0x3fff', ('vm', f'buffer_load_dwordx4 {vr(vGt,4)}, v121, {sr(SGW,4)}, 0 offen', 'gate'), 's_mov_b64 exec, -1'])
            else: raise ValueError(it)
        return out
    def do(pt): s.run(items(pt))
    s('B_START:')
    if cfg.get('fast0'): chunk_sgprs(s, 1, 2)
    else: s(GATE_A)
    s(f'''s_mov_b32 s{sTAG+1}, {WS_F+0x1000}
s_waitcnt lgkmcnt(0)
s_load_dword s{sTAG}, {sr(SWS,2)}, s{sTAG+1}''')
    s.stamp('kargB' if cfg.get('fast0') else 'karg')
    do('pre0')
    s(f'''v_lshrrev_b32 v5, 1, v4
v_and_b32 v8, 1, v4
v_lshlrev_b32 v8, 9, v8
v_lshl_add_u32 v120, v5, 10, v8
v_add_u32 v120, {L_DF + 14*16}, v120''')
    prologue2(s)
    do('pre1')
    wsrc_setup(s)
    s(f'''v_add_u32 v{vWr2}, {L_WV2}, v{vWr}
v_add_u32 v{vWr}, {L_SP}, v{vWr}
v_add_u32 v{vWv}, 896, v{vWs}
s_sub_u32 s60, s{sHQ}, s{sH}
s_mul_i32 s60, s60, 56
s_sub_u32 s60, s60, 896
v_add_u32 v{vWq}, s60, v{vWs}
v_subrev_u32 v28, {2*458752}, v{vX}
v_subrev_u32 v29, {2*458752}, v{vX+1}
v_add_u32 v{vDr}, {L_DF}, v{v16}''')
    do('pre2')
    s(f'''v_and_b32 v4, 15, v{vL}
v_min_u32 v5, 13, v4
s_mul_i32 s60, s{sH}, 14
v_add_u32 v5, s60, v5
v_cmp_eq_u32 vcc, 15, v4
v_mov_b32 v8, 224
v_cndmask_b32 v5, v5, v8, vcc
v_cvt_f32_u32 v5, v5
v_mul_f32 v124, {f2h(1/448)}, v5
v_bfe_u32 v4, v{vL}, 4, 1
v_cvt_f32_u32 v4, v4
v_mul_f32 v4, 0x3e800000, v4
s_lshl_b32 s60, s{sG}, 4
v_lshl_add_u32 v5, v7, 3, s60
v_cvt_f32_u32 v5, v5
v_fma_f32 v125, v5, v124, v4
s_lshl_b32 s60, s{sG}, 10
v_add_u32 v126, s60, v{vDr}''')
    s('v_cos_f32 v123, v124')
    s('v_add_f32 v123, v123, v123')
    def dfrag(i, R=None):
        R, c = R or 240 + 4 * (i & 1), [4, 5, 8, 9]
        it = [f's_lshr_b32 s60, s{sCX+i}, 1', 'v_cvt_f32_u32 v4, s60', 'v_fma_f32 v4, v4, v124, v125', 'v_add_f32 v5, v4, v124',
              'v_cos_f32 v4, v4', 'v_cos_f32 v5, v5']
        for j in range(4):
            a, b, p, q = c[(2*j) & 3], c[(2*j+1) & 3], c[(2*j+2) & 3], c[(2*j+3) & 3]
            if j < 3: it += [f'v_fma_f32 v{p}, v123, v{b}, -v{a}', f'v_cvt_pk_bf16_f32 v{R+j}, v{a}, v{b}', f'v_fma_f32 v{q}, v123, v{p}, -v{b}']
            else: it += [f'v_cvt_pk_bf16_f32 v{R+j}, v{a}, v{b}']
        it += ['s_mov_b32 exec_lo, 0xffffbfff', 's_mov_b32 exec_hi, 0xffffbfff', ('ds', f'ds_write_b128 v126, {vr(R,4)} offset:{4096*i}', f'dfw{i}'), 's_mov_b64 exec, -1']
        return it
    ndf = cfg.get('ndf', 3)
    for k in range(4): s(f'v_add_u32 v{24+k}, 0x10000, v{vXr+k}')
    dfw = []
    for i in range(ndf):
        d = dfrag(i, 208 + 4 * i if cfg.get('dfdefer') else None)
        if cfg.get('dfdefer'): s.run(d[:-4]); dfw.append(d[-2])
        else: s.run(d)
    do('pre3')
    tw = ['v_lshrrev_b32 v4, 1, v6', 'v_cvt_f32_u32 v122, v4', f'v_mul_f32 v122, {f2h(1/32)}, v122', 'v_and_b32 v5, 1, v6',
          'v_cvt_f32_u32 v5, v5', 'v_mul_f32 v5, 0x3e800000, v5', 'v_cvt_f32_u32 v8, v7', 'v_mul_f32 v8, 4.0, v8', 'v_fma_f32 v127, v122, v8, v5',
          'v_and_b32 v4, 1, v4', 'v_mul_u32_u24 v2, 0x8000, v4', 'v_lshl_or_b32 v2, v2, 16, v2']
    for j in range(4):
        o = 2 * (j & 1) + 8 * (j >> 1)
        tw += [f'v_fmamk_f32 v8, v122, {f2h(o)}, v127', f'v_fmamk_f32 v9, v122, {f2h(o+1)}, v127',
               'v_cos_f32 v4, v8', 'v_cos_f32 v5, v9', 'v_sin_f32 v8, v8', 'v_sin_f32 v9, v9',
               f'v_cvt_pk_bf16_f32 v{T1+j}, v4, v5', f'v_cvt_pk_bf16_f32 v{T1+8+j}, v8, v9',
               f'v_xor_b32 v{T1+4+j}, v2, v{T1+j}', f'v_xor_b32 v{T1+12+j}, v2, v{T1+8+j}']
    tw += f'''v_bfe_u32 v4, v{vL}, 1, 2
v_xor_b32 v4, v4, v7
v_lshlrev_b32 v4, 4, v4
v_lshl_add_u32 v4, v6, 6, v4
s_lshl_b32 s60, s{sG}, 11
s_add_u32 s60, s60, {L_V}
v_add_u32 v{vVW}, s60, v4
v_xor_b32 v{vVW+1}, 32, v{vVW}
s_lshl_b32 s60, s{sHQ}, 2
s_add_u32 s60, s60, s{sG}
s_lshl_b32 s60, s60, 14
s_add_u32 s60, s60, {WS_P}
v_add_u32 v13, s60, v{v16}'''.split('\n')
    lf = {i: [] for i in range(7)}
    for i in range(ndf, 7): lf[i - ndf + cfg.get('dfo', 0)] += dfrag(i)
    tw0 = cfg.get('tw0', 7 - ndf)
    if tw0 < 0: s.run(tw)
    else:
        cuts = [0, 22, 32, 42, 52, len(tw)]
        seg = [tw[cuts[k]:cuts[k+1]] for k in range(5)]
        n = 7 - tw0
        for k in range(5): lf[tw0 + k * n // 5] += seg[k]
    def postB(i): return lf[i]
    def dread(sl): return [('ds', f'ds_read_b128 {vr(RING+4*(sl%8),4)}, v{vDr} offset:{1024*sl}', f'df{sl}')]
    s.stamp('dfd')
    if dfw: s.run(['s_mov_b32 exec_lo, 0xffffbfff', 's_mov_b32 exec_hi, 0xffffbfff'] + dfw + ['s_mov_b64 exec, -1'])
    s.wait(vtag='gate')
    s.stamp('gw')
    s('s_mov_b64 exec, 0x3fff')
    s.ds(f'ds_write_b128 v120, {vr(vGt,4)}')
    s('s_mov_b64 exec, -1')
    s.wait(dtag='all')
    s.run(TAGC)
    chunk_loop(s, cfg, dread, 'df', lambda sl: mf32(vr(AD,16), vr(XF+4*sl,4), vr(RING+4*(sl%8),4), vr(AD,16) if sl else '0'),
               items, lambda i: [f'x{i}', f'wk{i}'] + (['pf'] if i == 6 else []), postB)
    VB = 116
    s.stamp('kdone')
    do('kd')
    nv1 = cfg.get('nv1', 7)
    PK, QK, UA, UP = 240, 248, AD, 240
    lastw(s, [f'wv{i}' for i in range(nv1)]); s('s_barrier')
    s.stamp('Bv1')
    if 'pB0' in cfg: s(f's_setprio {cfg["pB0"]}')
    st1 = f'''v_lshlrev_b32 v4, 4, v7
s_lshl_b32 s60, s{sG}, 7
s_add_u32 s60, s60, {L_GX}
v_add_u32 v10, s60, v4
s_lshl_b32 s60, s{sG}, 2
s_add_u32 s60, s60, {L_UX}
v_add_u32 v11, s60, v{v16}'''.split('\n')
    st1.append(['s_mov_b32 exec_lo, 0x4000', 's_mov_b32 exec_hi, 0x4000'] + [('ds', f'ds_write_b128 v10, {vr(AD+4*q,4)} offset:{32*q}', 'gxw') for q in range(4)] +
               ['s_mov_b64 exec, -1'])
    for j in range(8): st1.append(f'v_cvt_pk_bf16_f32 v{PK+j}, v{AD+2*j}, v{AD+2*j+1}')
    for j in range(8): st1.append(f'v_xor_b32 v{QK+j}, 0x80000000, v{PK+j}')
    for j in range(8): st1.append(f'v_permlane16_swap_b32 v{PK+j}, v{QK+j}')
    st1.append([('wl', 'gxw'), mf32(vr(UA,16), vr(T1,4), vr(PK,4), '0'), mf32(vr(UA,16), vr(T1+4,4), vr(PK+4,4), vr(UA,16)),
                mf32(vr(UA,16), vr(T1+8,4), vr(QK,4), vr(UA,16)), mf32(vr(UA,16), vr(T1+12,4), vr(QK+4,4), vr(UA,16))])
    ua = uaddr(8, 44, 45) + [f's_lshl_b32 s60, s{sG}, 11', f's_add_u32 s60, s60, {L_UX}', f'v_add_u32 v12, s60, v{v16}']
    st2 = []
    for i in range(8): st2 += [f'v_cvt_pk_bf16_f32 v{UP+i}, v{UA+2*i}, v{UA+2*i+1}', ('ds', f'ds_write_b32 v11, v{UP+i} offset:{1024*i}', 'uxw')]
    urd = [('ds', f'ds_read_b128 {vr(UP+8,4)}, v12', 'u0'), ('ds', f'ds_read_b128 {vr(UP+12,4)}, v12 offset:1024', 'u1')]
    ust = [('wl', 'u1'), ('vm', f'buffer_store_dwordx4 {vr(UP+8,4)}, v8, {sr(SWS,4)}, s44 offen sc1'),
           ('vm', f'buffer_store_dwordx4 {vr(UP+12,4)}, v8, {sr(SWS,4)}, s45 offen sc1', 'ust'), ('st', 'ui')]
    assert nv1 < 7
    g1 = gemm_groups('v', 0, 4 * nv1, AV)
    g2 = gemm_groups('v', 4 * nv1, 28, AV)
    n1 = len(g1)
    s.run(spread(g1, items('v0') + st1 + items('v1') + ua + st2, cfg.get('vf0', 0), cfg.get('vf1', n1)))
    s.stamp('vm0'); do('vm'); s.stamp('vm1')
    lastw(s, [f'wv{i}' for i in range(7)]); s.wait(dtag='uxw'); s.stamp('vm2'); s('s_barrier'); s.stamp('Bv2')
    g2[0] = g2[0][:8] + urd + g2[0][8:]
    vg = g2
    fill = [ust] + items('v2') + ['s_movk_i32 s48, 4096', 's_movk_i32 s49, 8192', 's_movk_i32 s50, 12288']
    s.run(spread(vg, fill, cfg.get('vf2', 1), cfg.get('vf3', 10)))
    s(f'v_mov_b32 v{VB+6}, 0x3f80\nv_mov_b32 v{VB+7}, 0')
    FC = [f'v_cmp_ne_u32 vcc, s{sTAG}, v127']
    FL = [f'buffer_load_dword v127, v2, {sr(SWS,4)}, s{sTAG+1} offen sc1']
    tail += ['B_USPIN:', 's_movk_i32 s67, 2000', 'B_USP:'] + FL + ['s_sub_u32 s67, s67, 1',
             's_waitcnt vmcnt(0)', 's_cmp_eq_u32 s67, 0', 's_cbranch_scc1 B_UOK'] + FC + ['s_cbranch_vccnz B_USP', 's_branch B_UOK']
    for u in range(2):
        for j in range(4 * u, 4 * u + 4):
            if j == 6: s('s_mov_b32 exec_hi, 0')
            s(f'v_cvt_pk_bf16_f32 v{VB+j}, v{AV+2*j}, v{AV+2*j+1}')
        if u == 1: s('s_mov_b32 exec_hi, -1')
        s.ds(f'ds_write_b128 v{vVW+u}, {vr(VB+4*u,4)}')
    bp = cfg.get('bp', 0)
    s.stamp('vdone')
    if not bp: lastw(s, [f'wq{i}' for i in range(7)])
    if 'pB0' in cfg: s('s_setprio 0')
    s.wait(dtag='all'); s('s_barrier')
    s.stamp('Bkv')
    GB, SUM, UL = XF, 192, 112
    def psoff(p): return ['0', 's48', 's49', 's50'][p >> 2] + ' offen' + (f' offset:{1024*(p&3)}' if p & 3 else '')
    def pissue():
        s.stamp('gi')
        for p in range(16): s.vm(f'buffer_load_dwordx4 {vr(GB+4*p,4)}, v13, {sr(SWS,4)}, {psoff(p)} sc1', f'PG{p}')
    f2a = [f's_lshl_b32 s61, s{sRB}, 4', f's_add_u32 s61, s61, s{sH}', 's_lshl_b32 s61, s61, 2', f's_add_u32 s61, s61, s{sG}', 's_lshl_b32 s61, s61, 7', f's_add_u32 s61, s61, {WS_F2}',
           f'v_mov_b32 v4, s{sTAG}', 'v_mov_b32 v5, s61', ('wv', 'ust'), 's_mov_b64 exec, 1',
           ('vm', f'buffer_store_dword v4, v5, {sr(SWS,4)}, 0 offen sc1', 'f2'), 's_mov_b64 exec, -1', ('st', 'f2')]
    f2b = []
    SEL = 208
    sel = f'''v_bfe_u32 v4, v{vL}, 3, 2
v_and_b32 v5, 3, v{vL}
v_lshl_add_u32 v4, v4, 2, v5
v_bfe_u32 v5, v{vL}, 2, 1
v_lshrrev_b32 v6, 5, v{vL}
v_xor_b32 v5, v5, v6
v_lshl_add_u32 v4, v5, 4, v4
v_and_b32 v5, 1, v4
v_lshlrev_b32 v5, 4, v5
v_mov_b32 v6, 0x3f80
v_lshlrev_b32 v5, v5, v6
v_lshrrev_b32 v6, 1, v4
v_cmp_eq_u32 vcc, 0, v6
v_cndmask_b32 v{SEL}, 0, v5, vcc
v_cmp_eq_u32 vcc, 1, v6
v_cndmask_b32 v{SEL+1}, 0, v5, vcc
v_cmp_eq_u32 vcc, 2, v6
v_cndmask_b32 v{SEL+2}, 0, v5, vcc
v_cmp_eq_u32 vcc, 6, v4
v_cndmask_b32 v{SEL+3}, 0, v5, vcc'''.split('\n')
    f2w = cfg.get('f2w', 1)
    do('kv0')
    fsB = cfg.get('fsB', 1)
    if fsB == 0: s.run(final_setup(1))
    do('kv1')
    if bp:
        lastw(s, [f'wq{i}' for i in range(7)]); s('s_barrier')
        s.stamp('Bp')
    if f2w == 0: s.run(f2a + f2b)
    do('kv2')
    if fsB == 1: s.run(final_setup(1))
    do('kv')
    if f2w == 1: s.run(f2a + f2b)
    if 'pdel' in cfg:
        s(f's_movk_i32 s60, {cfg.get("pmask", 0x2a54)}\ns_bitcmp1_b32 s60, s{sHQ}\ns_cbranch_scc0 B_PI\ns_waitcnt vmcnt({cfg["pdel"]})\nB_PI:')
    pissue()
    if 'pB1' in cfg: s(f's_setprio {cfg["pB1"]}')
    do('q')
    if fsB == 2: s.run(final_setup(1))
    s.run(sel)
    s(f'''s_lshl_b32 s60, s{sJ}, 6
v_add_u32 v4, s60, v{vL}
v_sub_u32 v5, 448, v4
s_movk_i32 s61, 224
v_cmp_le_u32 vcc, s61, v4
v_cndmask_b32 v4, v4, v5, vcc
s_sub_u32 s61, 32, s{sCL}
s_and_b32 s61, s61, 31
v_mov_b32 v5, s{sCL}
v_mov_b32 v6, s61
v_cndmask_b32 v5, v5, v6, vcc
v_mul_u32_u24 v6, 4682, v4
v_lshrrev_b32 v6, 16, v6
v_lshl_add_u32 v4, v6, 1, v4
v_lshlrev_b32 v4, 4, v4
v_min_u32 v4, 4080, v4
v_lshl_add_u32 v10, v5, 16, v4
v_min_u32 v6, 15, v6
v_bfe_u32 v5, v5, 2, 2
v_lshl_add_u32 v5, v6, 2, v5
v_and_b32 v4, 15, v{vL}
v_bfe_u32 v6, v{vL}, 3, 1
v_lshlrev_b32 v4, 4, v4
v_mad_u32_u24 v4, v6, 12, v4''')
    s.ds('ds_bpermute_b32 v2, v4, v5', 'fperm')
    s(f'''v_lshrrev_b32 v4, 4, v{vL}
s_lshl_b32 s{sTAG+1}, s{sG}, 15
s_add_u32 s{sTAG+1}, s{sTAG+1}, {WS_F2}
s_lshl_b32 s60, s{sG}, 14
s_add_u32 s60, s60, {WS_U}
v_add_u32 v10, s60, v10
s_lshl_b32 s61, s{sG}, 12
s_add_u32 s61, s61, {L_UT}
v_add_u32 v11, s61, v{v16}
s_lshl_b32 s60, s{sG}, 10
s_add_u32 s60, s60, {L_KX}
v_add_u32 v12, s60, v{v16}''')
    s.wait(dtag='fperm')
    s('v_lshl_add_u32 v2, v4, 6, v2\nv_lshlrev_b32 v2, 7, v2')
    if f2w == 2: s.run(f2a + f2b)
    def usoff(p): return ['0', 's48', 's49', 's50'][p]
    def uissue():
        for p in range(4): s.vm(f'buffer_load_dwordx4 {vr(UL+4*p,4)}, v10, {sr(SWS,4)}, {usoff(p)} offen sc1', f'UG{p}')
        if not cfg.get('uearly'): g_issue(s, 'GB')
    fl2 = [('vm', FL[0], 'fl2')] if not cfg.get('nof2') else []
    f2p = cfg.get('fl2_at', 8)
    def work(p): return [mf32(vr(SUM,16), vr(SEL,4), vr(GB+4*p,4), vr(SUM,16) if p else '0')]
    if f2p < 0: s.run(fl2)
    gather(s, 'PG', 16, GB, 13, psoff, work, tail, xld=FL if cfg.get('xfl') and f2p < 0 else ())
    if s.stamp_on: s('s_mov_b32 s100, s67')
    for j in range(4): s(f'v_cvt_pk_bf16_f32 v{SUM+8+j}, v{SUM+2*j}, v{SUM+2*j+1}')
    s.ds(f'ds_write_b128 v12, {vr(SUM+8,4)}')
    s.stamp('gok')
    if 'pB1' in cfg: s(f's_setprio 0')
    s.vdone = 0
    if f2w == 3: s.run(f2a + f2b)
    if f2p >= 0: s.run(fl2)
    do('gk')
    ue = cfg.get('uearly')
    if ue:
        s.wait(dtag='all')
        s(f's_cmp_ge_u32 s{sJ}, 7\ns_cbranch_scc1 B_J7')
        tail += ['B_J7:', 's_waitcnt vmcnt(0)', 's_barrier', 's_branch B_FIN']
        if ue == 2: lastw(s, [f'wo{i}' for i in range(4)]); s('s_barrier'); s.stamp('Bs')
        if ue == 3:
            lastw(s, [f'wo{i}' for i in range(4)])
            s.wait(vtag='fl2'); s.run(FC + ['s_cbranch_vccnz B_ULATE'])
            tail += ['B_ULATE:', 's_barrier', 's_branch B_USPIN', 'B_UOK:'] + \
                    [f'buffer_load_dwordx4 {vr(UL+4*p,4)}, v10, {sr(SWS,4)}, {usoff(p)} offen sc1' for p in range(4)] + ['s_branch B_BS']
            s.stamp('UG0')
            uissue()
            s('s_barrier'); s('B_BS:'); s.stamp('Bs')
        else:
            if fl2: s.wait(vtag='fl2'); s.run(FC + ['s_cbranch_vccnz B_USPIN'])
            s('B_UOK:')
            s.stamp('UG0')
            uissue()
    wol = cfg.get('wo_at', 'Bs') == 'Bu'
    if ue not in (2, 3):
        if not wol: lastw(s, [f'wo{i}' for i in range(4)])
        s.wait(dtag='all'); s('s_barrier')
        s.stamp('Bs')
    if not ue: s(f's_cmp_ge_u32 s{sJ}, 7\ns_cbranch_scc1 B_FIN')
    wr = [] if wol else wo_reads()
    nw = cfg.get('woB_pre', 0)
    s.run(wr[:nw])
    if not ue:
        if fl2: s.wait(vtag='fl2'); s.run(FC + ['s_cbranch_vccnz B_USPIN'])
        s('B_UOK:')
        s.stamp('UG0')
        uissue()
    else: g_issue(s, 'GB')
    do('us')
    s.run(wr[nw:])
    if cfg.get('oissB', 0) == -1: o_issue(s, 'OB')
    for p in range(4):
        s.wait(vtag=f'UG{p}'); s.ds(f'ds_write_b128 v11, {vr(UL+4*p,4)} offset:{1024*p}')
    if not cfg.get('glate'): gather(s, 'GB', 1, 20, 29, lambda p: '0 offen', lambda p: [], tail, width=2)
    if s.stamp_on: s('s_mov_b32 s101, s67')
    s.stamp('uok')
    if cfg.get('oissB', 0) == 0: o_issue(s, 'OB')
    if wol: s.vdone = 0; lastw(s, [f'wo{i}' for i in range(4)])
    s.wait(dtag='all')
    s('s_barrier')
    final_stage(s, 1, cfg, tail)
    s(f'''s_lshl_b32 s60, s2, 3
s_add_u32 s60, s60, s{sW}
s_cmp_lg_u32 s60, 4
s_cbranch_scc1 B_FIN
v_mov_b32 v4, s{sTAG}
v_mov_b32 v5, {WS_F+0x1000}
s_mov_b64 exec, 1
buffer_store_dword v4, v5, {sr(SWS,4)}, 0 offen sc1''')
    s('B_FIN:')
    stamp_store(s)
    s('K_END:\ns_endpgm')
    s.run(tail)
    s('K_LAST:\ns_endpgm')

def build(cfg):
    SELRT[0] = cfg.get('selrt', 0)
    WPOL[0] = cfg.get('wpol', '')
    plan = {r: dict(DEF_PLAN[r]) for r in 'AB'}
    for r in 'AB': plan[r].update(cfg.get('plan', {}).get(r, {}))
    a = Sched(); a.stamp_on = cfg.get('stamps', False); a.stamp_base = STB
    EARLY = [f'W{i}' for i in range(7)] + [f'B{i}' for i in range(1, 7)]
    LATE = ['Bkv', 'pub', 'Bq', 'smq', 'Bs', 'ost', 'Bu', 'OA0', 'OB0', 'og', 'end', 'dbgok', 'gi', 'PG0', 'gok', 'uok', 'drain', 'GA0', 'GB0', 'UG0', 'Y']
    if cfg.get('mid'):
        cfg['skipA'] = EARLY[:5] + ['B1', 'B2', 'B3', 'B4', 'B5', 'Bs', 'ost', 'Bu', 'OA0', 'og', 'end', 'GA0', 'Y', 'drain', 'fok', 'karg']
        cfg['skipB'] = EARLY[:5] + ['B0', 'B1', 'B2', 'B3', 'B4', 'B5', 'Bs', 'Bu', 'OB0', 'og', 'end', 'GB0', 'UG0', 'Y', 'drain', 'uok']
    LATE += ['smk', 'vdone', 'Bv2', 'Bp', 'f2', 'fok', 'vm0', 'vm1', 'vm2', 'ui']
    if cfg.get('mid'):
        cfg['skipB'] += ['dfd', 'gw', 'W5', 'W6', 'B6', 'karg']; cfg['skipA'] += ['W5', 'W6']
    if cfg.get('early'):
        cfg['skipA'] = LATE + ['B1', 'B3', 'B5', 'B4']; cfg['skipB'] = LATE + ['B1', 'B3', 'B5', 'B4', 'B2', 'B6']
    a.stamp_skip = cfg.get('skipA', EARLY + ['kdone', 'GA0', 'Y', 'drain', 'smk', 'Bv2', 'karg', 'vm0', 'vm2'])
    b = Sched(); b.a = a.a; b.stamp_on = a.stamp_on; b.stamp_base = STB
    if cfg.get('fast0'): prologue_fast(a, b, cfg)
    else:
        prologue(a, cfg); b.stamps = list(a.stamps)
    b.stamp_skip = cfg.get('skipB', EARLY + ['B0', 'Bs', 'Y', 'end', 'GB0', 'kdone', 'vdone', 'Bv2', 'dfd', 'gw', 'vm0', 'vm1', 'vm2', 'ui'])
    gen_A(a, cfg, plan['A'])
    gen_B(b, cfg, plan['B'])
    assert len(a.stamps) <= 15 and len(b.stamps) <= 15, (a.stamps, b.stamps)
    txt = build_file([dict(name=KN, asm=a.a, grid=256, block=512, lds=163840, vgpr=256, agpr=0)])
    return txt, a, b

if __name__ == '__main__':
    cfg = json.loads(sys.argv[2]) if len(sys.argv) > 2 else {}
    txt, a, b = build(cfg)
    open(sys.argv[1], 'w').write(txt)
    print('instrs', a.a.count, 'nops', a.a.nops)
    print('stamps', a.stamps, b.stamps)
```
